```python
import torch

def _softmax(x, axis=-1):
    return torch.softmax(x, dim=axis)
def _gelu(x):
    return torch.nn.functional.gelu(x, approximate="tanh")
def _silu(x):
    return torch.nn.functional.silu(x)
def _sigmoid(x):
    return torch.sigmoid(x)
def _layernorm(x, axis=-1, eps=1e-5):
    m = x.mean(dim=axis, keepdim=True)
    v = x.var(dim=axis, keepdim=True, unbiased=False)
    return (x - m) / torch.sqrt(v + eps)
def _scatter_add(tgt, idx, src, axis=0):
    return tgt.clone().index_add_(axis, idx, src)
def _segment_sum(src, seg, n):
    out = torch.zeros((n,) + src.shape[1:], dtype=src.dtype)
    return out.index_add_(0, seg, src)
def _pad(x, pw):
    flat = tuple(v for pair in reversed(pw) for v in pair)
    return torch.nn.functional.pad(x, flat)

kernel_name = 'parallel_sum__linear_kernel_hedgehog__moe_arch_mod__prompt'

def setup_inputs():

    _w = (lambda a: (lambda t: t.to(torch.bfloat16) if t.is_floating_point() else t)(torch.as_tensor(a)))
    def _A_setup():
        B, S, D, H = 1, 2048, 640, 32
        Dh = D // H
        return {
            "x": _w((lambda *s: torch.randn(*s, dtype=torch.bfloat16) * 0.05)(B, S, D)),
            "wqkv": _w((lambda *s: torch.randn(*s, dtype=torch.bfloat16) * 0.4)(D, 3 * D)),
            "w_phi": _w((lambda *s: torch.randn(*s, dtype=torch.bfloat16) * 0.4)(H, Dh, Dh) * (Dh ** -0.5)),
            "wo": _w((lambda *s: torch.randn(*s, dtype=torch.bfloat16) * 0.1)(D, D)),
        }
    _A_in = _A_setup()

    def _B_setup():
        B, S, D, F, C = 1, 2048, 640, 1536, 1
        return {
            "x": _w((lambda *s: torch.randn(*s, dtype=torch.bfloat16) * 0.05)(B, S, D)),
            "w_r": _w((lambda *s: torch.randn(*s, dtype=torch.bfloat16) * 0.05)(D)),
            "w_gate": _w((lambda *s: torch.randn(*s, dtype=torch.bfloat16) * 0.05)(D, F)),
            "w_up": _w((lambda *s: torch.randn(*s, dtype=torch.bfloat16) * 0.05)(D, F)),
            "w_down": _w((lambda *s: torch.randn(*s, dtype=torch.bfloat16) * 0.05)(F, D)),
        }
    _B_in = _B_setup()

    return {
        "A_x": _A_in["x"],
        "A_wqkv": _A_in["wqkv"],
        "A_w_phi": _A_in["w_phi"],
        "A_wo": _A_in["wo"],
        "B_x": _B_in["x"],
        "B_w_r": _B_in["w_r"],
        "B_w_gate": _B_in["w_gate"],
        "B_w_up": _B_in["w_up"],
        "B_w_down": _B_in["w_down"],
    }

def reference(A_x, A_wqkv, A_w_phi, A_wo, B_x, B_w_r, B_w_gate, B_w_up, B_w_down):
    def _A_ref(x, wqkv, w_phi, wo):
        B, S, D = x.shape
        H = 32; Dh = D // H
        qkv = (lambda x, *d: x.permute(*d))((x @ wqkv).reshape(B, S, 3, H, Dh), 2, 0, 3, 1, 4)
        q, k, v = qkv[0], qkv[1], qkv[2]
        pq = torch.einsum("bhsd,hdf->bhsf", q, w_phi)
        pk = torch.einsum("bhsd,hdf->bhsf", k, w_phi)
        phi_q = torch.concatenate([_softmax(pq, axis=-1), _softmax(-pq, axis=-1)], axis=-1)
        phi_k = torch.concatenate([_softmax(pk, axis=-1), _softmax(-pk, axis=-1)], axis=-1)
        kv = torch.einsum("bhsf,bhsd->bhfd", phi_k, v)
        z  = torch.einsum("bhsf->bhf", phi_k)
        num = torch.einsum("bhqf,bhfd->bhqd", phi_q, kv)
        den = torch.einsum("bhqf,bhf->bhq", phi_q, z)[..., None] + 1e-6
        o = num / den
        return (lambda x, *d: x.permute(*d))(o, 0, 2, 1, 3).reshape(B, S, D) @ wo

    def _B_ref(x, w_r, w_gate, w_up, w_down):
        B, S, D = x.shape
        C = 1
        r = x @ w_r
        idx = torch.argsort(-r, axis=-1)[:, :C]
        idx_e = (lambda x, n, axis: torch.repeat_interleave(x, n, dim=axis))(idx.reshape(B, C, 1), D, axis=2)
        x_sel = (lambda x, i, axis: torch.take_along_dim(x, i, dim=axis))(x, idx_e, axis=1)
        g = _silu(x_sel @ w_gate)
        u = x_sel @ w_up
        y = (g * u) @ w_down
        r_sel = _sigmoid((lambda x, i, axis: torch.take_along_dim(x, i, dim=axis))(r, idx, axis=1))
        y = y * r_sel.reshape(B, C, 1)
        b_off = (torch.arange(B) * S).reshape(B, 1)
        flat_idx = (idx + b_off).reshape(B * C)
        zero = (x * 0.0).reshape(B * S, D)
        upd = _scatter_add(zero, flat_idx, y.reshape(B * C, D), axis=0)
        return x + upd.reshape(B, S, D)

    x = A_x
    xn = _layernorm(x, axis=-1)
    return x + _A_ref(xn, A_wqkv, A_w_phi, A_wo) + _B_ref(xn, B_w_r, B_w_gate, B_w_up, B_w_down)
```

```python
import sys

WS_PHIQ  = 0x000000
WS_KVP   = 0x500000
WS_STATS = 0x800000
WS_KEYS  = 0x804000
WS_KVF   = 0x810000
WS_WOF   = 0x830000
WS_YP    = 0x900000
WS_MOE   = 0x920000
WS_BYTES = 0x1000000

class A:
    def __init__(self): self.l = []
    def __call__(self, s): self.l.append("    " + s)
    def lab(self, s): self.l.append(s + ":")
    def c(self, s): self.l.append("    ; " + s)
    def text(self): return "\n".join(self.l) + "\n"

NAME = "parallel_sum__linear_kernel_hedgehog__moe_arch_mod__prompt"

def kdesc(name, vgpr, sgpr=102, accum=None):
    accum = accum or ((vgpr + 3) // 4 * 4)
    return f""".amdhsa_kernel {name}
  .amdhsa_next_free_vgpr {vgpr}
  .amdhsa_next_free_sgpr {sgpr}
  .amdhsa_accum_offset {accum}
  .amdhsa_group_segment_fixed_size 0
  .amdhsa_kernarg_size 96
  .amdhsa_user_sgpr_count 2
  .amdhsa_user_sgpr_kernarg_segment_ptr 1
  .amdhsa_system_sgpr_workgroup_id_x 1
.end_amdhsa_kernel
"""

def srd(a, d, base, nbytes):
    a(f"s_mov_b32 s{d}, s{base}")
    a(f"s_and_b32 s{d+1}, s{base+1}, 0xffff")
    a(f"s_mov_b32 s{d+2}, {nbytes}")
    a(f"s_mov_b32 s{d+3}, 0x00020000")

def round_bf16(a, v):
    a(f"v_cvt_pk_bf16_f32 v{v}, v{v}, v{v}")
    a(f"v_lshlrev_b32 v{v}, 16, v{v}")

LOG2E = 0x3fb8aa3b

K1_LDS = 143360
L_W = 0; L_X = 65536; L_PHI = 131072; L_SQ = 137216; L_RS = 139264; L_RR = 139776; L_CSP = 140288; L_KEY = 142336
L_PK = 0; L_V = 32768

def softmax_pm(a, P, E, TMP, OUT):
    mx, mn, s0, s1, t0, t1 = TMP[:6]
    a(f"v_max3_f32 v{mx}, v{P[0]}, v{P[1]}, v{P[2]}")
    a(f"v_min3_f32 v{mn}, v{P[0]}, v{P[1]}, v{P[2]}")
    for i in range(3, 19, 2):
        a(f"v_max3_f32 v{mx}, v{mx}, v{P[i]}, v{P[i+1]}")
        a(f"v_min3_f32 v{mn}, v{mn}, v{P[i]}, v{P[i+1]}")
    a(f"v_max_f32 v{mx}, v{mx}, v{P[19]}")
    a(f"v_min_f32 v{mn}, v{mn}, v{P[19]}")
    a(f"s_mov_b32 s60, 0x{LOG2E:x}")
    a(f"v_mul_f32 v{mx}, s60, v{mx}")
    a(f"v_mul_f32 v{mn}, s60, v{mn}")
    for i in range(20):
        a(f"v_fma_f32 v{E[i]}, v{P[i]}, s60, -v{mx}")
        a(f"v_fma_f32 v{E[20+i]}, -v{P[i]}, s60, v{mn}")
    for i in range(40):
        a(f"v_exp_f32 v{E[i]}, v{E[i]}")
    a("s_nop 0")
    for base, s, t in ((0, s0, t0), (20, s1, t1)):
        a(f"v_add_f32 v{s}, v{E[base]}, v{E[base+1]}")
        a(f"v_add_f32 v{t}, v{E[base+2]}, v{E[base+3]}")
        for i in range(4, 20, 2):
            a(f"v_add_f32 v{s}, v{s}, v{E[base+i]}")
            a(f"v_add_f32 v{t}, v{t}, v{E[base+i+1]}")
        a(f"v_add_f32 v{s}, v{s}, v{t}")
    a(f"v_rcp_f32 v{s0}, v{s0}")
    a(f"v_rcp_f32 v{s1}, v{s1}")
    a("s_nop 0")
    for i in range(20):
        a(f"v_mul_f32 v{E[i]}, v{E[i]}, v{s0}")
        a(f"v_mul_f32 v{E[20+i]}, v{E[20+i]}, v{s1}")
    for i in range(20):
        a(f"v_cvt_pk_bf16_f32 v{OUT[i]}, v{E[2*i]}, v{E[2*i+1]}")

def gen_k1():
    a = A()
    a.lab("k1_kernel")
    a("s_cmp_ge_u32 s2, 256")
    a("s_cbranch_scc1 K1_END")
    a("s_load_dwordx4 s[4:7], s[0:1], 0")
    a("s_load_dwordx2 s[8:9], s[0:1], 16")
    a("s_load_dwordx2 s[10:11], s[0:1], 40")
    a("s_load_dwordx2 s[12:13], s[0:1], 88")
    a("s_and_b32 s14, s2, 7")
    a("s_lshr_b32 s15, s2, 3")
    a("s_and_b32 s28, s14, 1")
    a("s_lshl_b32 s28, s28, 3")
    a("s_and_b32 s29, s15, 7")
    a("s_add_u32 s28, s28, s29")
    a("s_lshr_b32 s29, s14, 1")
    a("s_lshl_b32 s29, s29, 2")
    a("s_lshr_b32 s15, s15, 3")
    a("s_add_u32 s29, s29, s15")
    a("v_lshrrev_b32 v1, 6, v0")
    a("v_and_b32 v2, 63, v0")
    a("s_nop 0")
    a("v_readfirstlane_b32 s30, v1")
    a("s_nop 3")
    a("s_and_b32 s31, s30, 3")
    a("s_lshr_b32 s32, s30, 2")
    a("s_add_u32 s58, s31, s32")
    a("s_and_b32 s58, s58, 3")
    LANE=2; L31=3; KH=4; R4=5; C4=6; MG=7
    a(f"v_and_b32 v{L31}, 31, v{LANE}")
    a(f"v_lshrrev_b32 v{KH}, 5, v{LANE}")
    a(f"v_bfe_u32 v{R4}, v{LANE}, 2, 2")
    a(f"v_and_b32 v{C4}, 3, v{LANE}")
    a(f"v_bfe_u32 v{MG}, v{LANE}, 4, 1")
    XLD0=8; XLD1=9; WLD=10
    T0=11; T1=12; T2=13; T3=14
    a(f"s_lshl_b32 s33, s31, 5")
    a(f"s_lshl_b32 s34, s32, 4")
    a(f"s_add_u32 s33, s33, s34")
    a(f"v_lshrrev_b32 v{T0}, 3, v{LANE}")
    a(f"v_add_u32 v{T0}, s33, v{T0}")
    a(f"s_movk_i32 s34, 1280")
    a(f"v_mul_lo_u32 v{T0}, v{T0}, s34")
    a(f"v_and_b32 v{T1}, 7, v{LANE}")
    a(f"v_lshrrev_b32 v{T2}, 4, v{LANE}")
    a(f"v_xor_b32 v{T1}, v{T1}, v{T2}")
    a(f"v_lshl_add_u32 v{XLD0}, v{T1}, 4, v{T0}")
    a(f"v_xor_b32 v{T1}, 4, v{T1}")
    a(f"v_lshl_add_u32 v{XLD1}, v{T1}, 4, v{T0}")
    a(f"v_add_u32 v{XLD1}, {8*1280}, v{XLD1}")
    a(f"v_and_b32 v{T1}, 15, v{LANE}")
    a(f"v_lshlrev_b32 v{T3}, 2, v{T2}")
    a(f"v_sub_u32 v{T1}, v{T1}, v{T3}")
    a(f"v_and_b32 v{T1}, 15, v{T1}")
    a(f"v_lshlrev_b32 v{T1}, 2, v{T1}")
    chunkT = [0,1,3,4, 2,0,1,2, 0,1,3,4, 2,3,4,0]
    typeT  = [0,0,0,0, 0,2,2,2, 1,1,1,1, 1,2,2,0]
    ct = sum(v << (4*i) for i, v in enumerate(chunkT)); tt = sum(v << (4*i) for i, v in enumerate(typeT))
    a(f"s_mov_b32 s36, 0x{ct & 0xffffffff:x}")
    a(f"s_mov_b32 s37, 0x{ct >> 32:x}")
    a(f"s_mov_b32 s38, 0x{tt & 0xffffffff:x}")
    a(f"s_mov_b32 s39, 0x{tt >> 32:x}")
    a(f"v_lshrrev_b64 v[16:17], v{T1}, s[36:37]")
    a(f"v_lshrrev_b64 v[18:19], v{T1}, s[38:39]")
    a(f"v_and_b32 v16, 15, v16")
    a(f"v_and_b32 v18, 15, v18")
    a(f"s_movk_i32 s34, 1280")
    a(f"v_mul_lo_u32 v18, v18, s34")
    a(f"v_lshl_add_u32 v16, v16, 4, v18")
    a(f"s_mul_i32 s35, s29, 80")
    a(f"v_add_u32 v16, s35, v16")
    a(f"s_lshl_b32 s35, s30, 3")
    a(f"v_add_u32 v{T2}, s35, v{T2}")
    a(f"s_movk_i32 s34, 3840")
    a(f"v_mul_lo_u32 v{T2}, v{T2}, s34")
    a(f"v_add_u32 v{WLD}, v{T2}, v16")
    a("s_waitcnt lgkmcnt(0)")
    srd(a, 16, 4, 2621440)
    srd(a, 20, 6, 2457600)
    srd(a, 24, 12, WS_BYTES)
    srd(a, 40, 8, 25600)
    srd(a, 44, 10, 1280)
    WPHI=15
    a(f"s_mul_i32 s34, s29, 1600")
    a(f"v_lshlrev_b32 v{T0}, 2, v0")
    a(f"buffer_load_dword v{WPHI}, v{T0}, s[40:43], s34 offen")
    WR=100
    a(f"v_lshlrev_b32 v{T0}, 1, v{LANE}")
    for kt in range(10):
        a(f"buffer_load_ushort v{WR+kt}, v{T0}, s[44:47], 0 offen offset:{128*kt}")
    a(f"s_mul_i32 s48, s28, {128*1280}")
    a(f"s_lshl_b32 s49, s33, 7")
    a(f"s_add_u32 s49, s49, {L_X}")
    a(f"s_lshl_b32 s50, s30, 11")
    a(f"s_add_u32 s50, s50, {L_W}")
    mask = ((1 << 64) - 1) & ~((1 << 15) | (1 << 19) | (1 << 39) | (1 << 59))
    a(f"s_mov_b32 s52, 0x{mask & 0xffffffff:x}")
    a(f"s_mov_b32 s53, 0x{mask >> 32:x}")
    def dma(kt):
        st = kt % 4
        a(f"s_add_u32 s54, s48, {kt*128}")
        a(f"s_add_u32 m0, s49, {st*16384}")
        a(f"s_nop 0")
        a(f"buffer_load_dwordx4 v{XLD0}, s[16:19], s54 offen lds")
        a(f"s_add_u32 m0, s49, {st*16384+1024}")
        a(f"s_nop 0")
        a(f"buffer_load_dwordx4 v{XLD1}, s[16:19], s54 offen lds")
        a(f"s_mov_b64 exec, s[52:53]")
        a(f"s_mov_b32 s55, {kt*64*3840}")
        a(f"s_add_u32 m0, s50, {st*16384}")
        a(f"s_nop 0")
        a(f"buffer_load_dwordx4 v{WLD}, s[20:23], s55 offen lds")
        a(f"s_mov_b32 s55, {(kt*64+4)*3840}")
        a(f"s_add_u32 m0, s50, {st*16384+1024}")
        a(f"s_nop 0")
        a(f"buffer_load_dwordx4 v{WLD}, s[20:23], s55 offen lds")
        a(f"s_mov_b64 exec, -1")
    for kt in range(3): dma(kt)
    XRD=[20,21,22,23]; ARD=[[24,25,26,27],[28,29,30,31]]; PADW=32; G=33; HF=34
    a(f"s_lshl_b32 s34, s31, 5")
    a(f"v_add_u32 v{T0}, s34, v{L31}")
    a(f"v_bfe_u32 v{T1}, v{T0}, 1, 3")
    a(f"v_xor_b32 v{T1}, v{T1}, v{KH}")
    a(f"v_lshlrev_b32 v{T0}, 7, v{T0}")
    a(f"v_lshl_add_u32 v{T0}, v{T1}, 4, v{T0}")
    a(f"v_add_u32 v{T0}, {L_X}, v{T0}")
    for i in range(4):
        a(f"s_add_u32 s34, s58, {i}")
        a(f"s_and_b32 s34, s34, 3")
        a(f"s_lshl_b32 s{60+i}, s34, 12")
        a(f"s_lshl_b32 s34, s34, 5")
        a(f"v_xor_b32 v{XRD[i]}, s34, v{T0}")
    a(f"v_lshl_add_u32 v{T0}, v{MG}, 2, v{C4}")
    a(f"v_lshrrev_b32 v{G}, 1, v{T0}")
    a(f"v_and_b32 v{HF}, 1, v{T0}")
    a(f"v_lshl_add_u32 v{T0}, v{KH}, 3, v{R4}")
    a(f"v_lshlrev_b32 v{T0}, 8, v{T0}")
    a(f"v_lshrrev_b32 v{T1}, 1, v{G}")
    a(f"v_lshl_add_u32 v{T1}, v{HF}, 1, v{T1}")
    a(f"v_lshl_add_u32 v{T1}, v{R4}, 2, v{T1}")
    a(f"s_lshl_b32 s34, s32, 3")
    a(f"v_add_u32 v{T1}, s34, v{T1}")
    a(f"v_and_b32 v{T1}, 15, v{T1}")
    a(f"v_lshl_add_u32 v{T1}, v{T1}, 4, v{T0}")
    a(f"v_and_b32 v{T2}, 1, v{G}")
    a(f"v_lshl_add_u32 v{T3}, v{T2}, 3, v{T1}")
    for i in range(4): a(f"v_add_u32 v{ARD[0][i]}, s{60+i}, v{T3}")
    a(f"v_lshl_add_u32 v{T1}, v{R4}, 2, v{G}")
    a(f"s_add_u32 s34, s34, 4")
    a(f"v_add_u32 v{T1}, s34, v{T1}")
    a(f"v_and_b32 v{T1}, 15, v{T1}")
    a(f"v_lshl_add_u32 v{T1}, v{T1}, 4, v{T0}")
    a(f"v_lshl_add_u32 v{T3}, v{HF}, 3, v{T1}")
    for i in range(4): a(f"v_add_u32 v{ARD[1][i]}, s{60+i}, v{T3}")
    a(f"v_lshlrev_b32 v{T1}, 2, v{C4}")
    a(f"v_add_u32 v{T1}, 15, v{T1}")
    a(f"v_and_b32 v{T1}, 15, v{T1}")
    a(f"v_lshlrev_b32 v{T1}, 4, v{T1}")
    a(f"v_lshl_add_u32 v{PADW}, v{LANE}, 8, v{T1}")
    SEL=56
    a(f"v_and_b32 v{T1}, 1, v{LANE}")
    a(f"v_cmp_eq_u32 vcc, v{T1}, v{MG}")
    a(f"v_mov_b32 v{T2}, 0x3f803f80")
    a(f"s_nop 1")
    for i in range(4):
        a(f"v_cndmask_b32 v{SEL+i}, 0, v{T2}, vcc")
    ACC0=64; ACC1=80; CSA=[96, 60]
    for i in range(32): a(f"v_mov_b32 v{ACC0+i}, 0")
    for i in range(4):
        a(f"v_mov_b32 v{CSA[0]+i}, 0"); a(f"v_mov_b32 v{CSA[1]+i}, 0")
    SQ0=110; SQ1=111
    a(f"v_mov_b32 v{SQ0}, 0"); a(f"v_mov_b32 v{SQ1}, 0")
    Z=36
    for i in range(4): a(f"v_mov_b32 v{Z+i}, 0")
    a(f"v_lshlrev_b32 v{T0}, 4, v0")
    a(f"v_add_u32 v{T0}, {L_PHI}, v{T0}")
    a(f"v_cmp_gt_u32 vcc, 384, v0")
    a(f"s_and_saveexec_b64 s[56:57], vcc")
    a(f"ds_write_b128 v{T0}, v[{Z}:{Z+3}]")
    a(f"s_mov_b64 exec, s[56:57]")
    a(f"v_mov_b32 v{T1}, {L_KEY}")
    a(f"ds_write_b32 v{T1}, v{Z}")
    a("s_waitcnt lgkmcnt(0)")
    a("s_barrier")
    a(f"v_mul_u32_u24 v{T0}, 328, v0")
    a(f"v_lshrrev_b32 v{T0}, 16, v{T0}")
    a(f"v_mul_u32_u24 v{T1}, 200, v{T0}")
    a(f"v_sub_u32 v{T1}, v0, v{T1}")
    a(f"v_mul_u32_u24 v{T2}, 6554, v{T1}")
    a(f"v_lshrrev_b32 v{T2}, 16, v{T2}")
    a(f"v_mul_u32_u24 v{T3}, 10, v{T2}")
    a(f"v_sub_u32 v{T1}, v{T1}, v{T3}")
    a(f"v_lshlrev_b32 v{T1}, 1, v{T1}")
    a(f"v_add_u32 v{T3}, 16, v{T2}")
    a(f"v_subrev_u32 v16, 4, v{T2}")
    a(f"v_cmp_gt_u32 vcc, 4, v{T2}")
    a(f"s_nop 1")
    a(f"v_cndmask_b32 v{T3}, v16, v{T3}, vcc")
    a(f"v_cmp_eq_u32 vcc, 1, v{T0}")
    a(f"s_nop 1")
    a(f"v_cndmask_b32 v{T2}, v{T2}, v{T3}, vcc")
    a(f"v_lshrrev_b32 v{T3}, 3, v{T2}")
    a(f"v_lshlrev_b32 v{T3}, 4, v{T3}")
    a(f"v_lshl_add_u32 v{T3}, v{T0}, 3, v{T3}")
    a(f"v_and_b32 v{T2}, 7, v{T2}")
    a(f"v_add_u32 v{T3}, v{T3}, v{T2}")
    a(f"v_lshrrev_b32 v{T2}, 4, v{T1}")
    a(f"v_lshlrev_b32 v{T2}, 5, v{T2}")
    a(f"v_bfe_u32 v16, v{T1}, 2, 2")
    a(f"v_lshl_add_u32 v{T2}, v16, 3, v{T2}")
    a(f"v_lshl_add_u32 v{T2}, v{T0}, 2, v{T2}")
    a(f"v_and_b32 v16, 3, v{T1}")
    a(f"v_add_u32 v{T2}, v{T2}, v16")
    a(f"v_lshlrev_b32 v{T3}, 7, v{T3}")
    a(f"v_lshl_add_u32 v{T3}, v{T2}, 1, v{T3}")
    a(f"v_add_u32 v{T3}, {L_PHI}, v{T3}")
    a(f"s_waitcnt vmcnt(12)")
    a(f"v_cmp_gt_u32 vcc, 400, v0")
    a(f"s_and_saveexec_b64 s[56:57], vcc")
    a(f"ds_write_b32 v{T3}, v{WPHI}")
    a(f"s_mov_b64 exec, s[56:57]")
    for kt in range(10):
        a(f"v_lshlrev_b32 v{WR+kt}, 16, v{WR+kt}")
        a(f"v_or_b32 v{WR+kt}, 0x3f80, v{WR+kt}")
    PADV=36
    def padw(kt):
        st = kt % 4
        a(f"s_cmp_lg_u32 s30, 0")
        a(f"s_cbranch_scc1 K1_NOPAD{kt}")
        a(f"v_mov_b32 v{PADV}, v{WR+kt}")
        a(f"v_mov_b32 v{PADV+2}, v{WR+kt}")
        a(f"ds_write_b128 v{PADW}, v[{PADV}:{PADV+3}] offset:{L_W + st*16384}")
        a.lab(f"K1_NOPAD{kt}")
    for kt in range(3): padw(kt)
    XF=[40,44]; AF=[[112,116],[120,124]]
    TA=48; TB=49; TC=50; TD=51
    def reads(kt, i, buf):
        st = kt % 4
        a(f"ds_read_b128 v[{XF[buf]}:{XF[buf]+3}], v{XRD[i]} offset:{st*16384}")
        for ti in range(2):
            for sec in range(2):
                b = AF[buf][ti] + 2*sec
                a(f"ds_read_b64_tr_b16 v[{b}:{b+1}], v{ARD[ti][i]} offset:{L_W + st*16384 + sec*1024}")
    a("s_waitcnt vmcnt(8) lgkmcnt(0)")
    a("s_barrier")
    reads(0, 0, 0)
    step = 0
    for kt in range(10):
        for i in range(4):
            buf = step & 1
            last = (kt == 9 and i == 3)
            if i == 3 and kt < 9:
                a(f"s_waitcnt vmcnt({4 if kt < 8 else 0}) lgkmcnt(0)")
                a("s_barrier")
                if kt + 3 < 10:
                    dma(kt + 3)
                    padw(kt + 3)
            if not last:
                nkt, ni = (kt, i + 1) if i < 3 else (kt + 1, 0)
                reads(nkt, ni, buf ^ 1)
                a("s_waitcnt lgkmcnt(5)")
            else:
                a("s_waitcnt lgkmcnt(0)")
            x = XF[buf]
            def sq(dws):
                for dw in dws:
                    a(f"v_lshlrev_b32 v{TA}, 16, v{x+dw}")
                    a(f"v_and_b32 v{TB}, 0xffff0000, v{x+dw}")
                    a(f"v_fmac_f32 v{SQ0}, v{TA}, v{TA}")
                    a(f"v_fmac_f32 v{SQ1}, v{TB}, v{TB}")
            a(f"v_mfma_f32_32x32x16_bf16 v[{ACC0}:{ACC0+15}], v[{AF[buf][0]}:{AF[buf][0]+3}], v[{x}:{x+3}], v[{ACC0}:{ACC0+15}]")
            if i in (0, 2): sq([0, 1])
            a(f"v_mfma_f32_32x32x16_bf16 v[{ACC1}:{ACC1+15}], v[{AF[buf][1]}:{AF[buf][1]+3}], v[{x}:{x+3}], v[{ACC1}:{ACC1+15}]")
            if i in (0, 2): sq([2, 3])
            if i == 1:
                for ti in range(2):
                    a(f"v_mfma_f32_16x16x32_bf16 v[{CSA[ti]}:{CSA[ti]+3}], v[{AF[buf][ti]}:{AF[buf][ti]+3}], v[{SEL}:{SEL+3}], v[{CSA[ti]}:{CSA[ti]+3}]")
            step += 1
    a("s_nop 15"); a("s_nop 7")
    a(f"v_add_f32 v{SQ0}, v{SQ0}, v{SQ1}")
    a(f"v_lshlrev_b32 v{T0}, 2, v0")
    a(f"v_add_u32 v{T0}, {L_SQ}, v{T0}")
    a(f"ds_write_b32 v{T0}, v{SQ0}")
    a(f"v_and_b32 v{T1}, 15, v{LANE}")
    a(f"v_lshrrev_b32 v{T2}, 4, v{LANE}")
    a(f"v_lshlrev_b32 v{T2}, 4, v{T2}")
    a(f"v_lshl_add_u32 v{T2}, v{T1}, 6, v{T2}")
    a(f"s_lshl_b32 s34, s31, 9")
    a(f"s_lshl_b32 s35, s32, 8")
    a(f"s_add_u32 s34, s34, s35")
    a(f"s_add_u32 s34, s34, {L_CSP}")
    a(f"v_add_u32 v{T2}, s34, v{T2}")
    a(f"v_cmp_gt_u32 vcc, 2, v{T1}")
    a(f"s_and_saveexec_b64 s[56:57], vcc")
    a(f"ds_write_b128 v{T2}, v[{CSA[0]}:{CSA[0]+3}]")
    a(f"ds_write_b128 v{T2}, v[{CSA[1]}:{CSA[1]+3}] offset:128")
    a(f"s_mov_b64 exec, s[56:57]")
    ROW=35
    a(f"s_lshl_b32 s34, s31, 5")
    a(f"v_add_u32 v{ROW}, s34, v{L31}")
    a(f"s_cmp_eq_u32 s32, 0")
    a(f"s_cbranch_scc1 K1_E0")
    a(f"v_lshlrev_b32 v{T1}, 2, v{ROW}")
    a(f"v_add_u32 v{T1}, {L_RS}, v{T1}")
    a(f"ds_write_b32 v{T1}, v{ACC1+12}")
    a(f"ds_write_b32 v{T1}, v{ACC1+13} offset:512")
    a.lab("K1_E0")
    a("s_waitcnt lgkmcnt(0)")
    a("s_barrier")
    a(f"v_lshlrev_b32 v{T1}, 2, v{ROW}")
    a(f"v_add_u32 v{T1}, {L_RS}, v{T1}")
    a(f"ds_read_b32 v{T2}, v{T1}")
    a(f"ds_read_b32 v{T3}, v{T1} offset:512")
    a(f"s_lshl_b32 s34, s31, 8")
    a(f"s_add_u32 s34, s34, {L_SQ}")
    a(f"v_lshlrev_b32 v{T0}, 2, v{L31}")
    a(f"v_add_u32 v{T0}, s34, v{T0}")
    a(f"ds_read_b32 v16, v{T0}")
    a(f"ds_read_b32 v17, v{T0} offset:128")
    a(f"ds_read_b32 v18, v{T0} offset:1024")
    a(f"ds_read_b32 v19, v{T0} offset:1152")
    CS=112
    a(f"v_lshlrev_b32 v{T0}, 4, v{KH}")
    a(f"s_lshl_b32 s35, s32, 8")
    a(f"s_add_u32 s35, s35, {L_CSP}")
    a(f"v_add_u32 v{T0}, s35, v{T0}")
    CT=144
    for part in range(4):
        dst = CS if part == 0 else CT
        for ti in range(2):
            for g in range(4):
                b = dst + 16*ti + 4*g
                a(f"ds_read_b128 v[{b}:{b+3}], v{T0} offset:{part*512 + ti*128 + g*32}")
        if part == 0:
            pass
        else:
            a("s_waitcnt lgkmcnt(0)")
            for i in range(32): a(f"v_add_f32 v{CS+i}, v{CS+i}, v{CT+i}")
    MB=52; RSTD=53; MR=54; RAWR=55
    a(f"v_add_f32 v16, v16, v17"); a(f"v_add_f32 v18, v18, v19"); a(f"v_add_f32 v16, v16, v18")
    a(f"s_mov_b32 s34, 0x3acccccd")
    a(f"v_mul_f32 v{MB}, s34, v{T2}")
    a(f"v_mul_f32 v16, s34, v16")
    a(f"v_fma_f32 v16, -v{MB}, v{MB}, v16")
    a(f"v_max_f32 v16, 0, v16")
    round_bf16(a, MB)
    round_bf16(a, 16)
    a(f"v_add_f32 v16, 0x3727c5ac, v16")
    round_bf16(a, 16)
    a(f"v_sqrt_f32 v16, v16")
    a("s_nop 0")
    round_bf16(a, 16)
    a(f"v_rcp_f32 v{RSTD}, v16")
    a("s_nop 0")
    a(f"v_mul_f32 v{MR}, v{MB}, v{RSTD}")
    a(f"v_mov_b32 v{RAWR}, v{T3}")
    for i in range(32):
        a(f"v_mul_f32 v{ACC0+i}, v{ACC0+i}, v{RSTD}")
        a(f"v_fma_f32 v{ACC0+i}, -v{MR}, v{CS+i}, v{ACC0+i}")
    BF=112
    for i in range(8): a(f"v_cvt_pk_bf16_f32 v{BF+i}, v{ACC0+2*i}, v{ACC0+2*i+1}")
    a(f"v_cvt_pk_bf16_f32 v{BF+8}, v{ACC1+0}, v{ACC1+1}")
    a(f"v_cvt_pk_bf16_f32 v{BF+9}, v{ACC1+2}, v{ACC1+3}")
    a(f"v_mov_b32 v{BF+10}, 0"); a(f"v_mov_b32 v{BF+11}, 0")
    VV=124
    for i in range(6): a(f"v_cvt_pk_bf16_f32 v{VV+i}, v{ACC1+4+2*i}, v{ACC1+5+2*i}")
    RVAL=130
    a(f"v_mov_b32 v{RVAL}, v{ACC1+13}")
    PA=132
    a(f"v_lshl_add_u32 v{T0}, v{KH}, 3, v{R4}")
    a(f"v_lshlrev_b32 v{T0}, 7, v{T0}")
    a(f"v_lshl_add_u32 v{T1}, v{MG}, 2, v{C4}")
    a(f"v_lshl_add_u32 v{T0}, v{T1}, 3, v{T0}")
    a(f"v_add_u32 v{T0}, {L_PHI}, v{T0}")
    for u in range(2):
        for t in range(3):
            for sec in range(2):
                b = PA + (u*3+t)*4 + 2*sec
                a(f"ds_read_b64_tr_b16 v[{b}:{b+1}], v{T0} offset:{t*2048 + sec*512 + u*64}")
    a("s_waitcnt lgkmcnt(0)")
    D0=64; D1=80
    for u, D in ((0, D0), (1, D1)):
        for t in range(3):
            b = PA + (u*3+t)*4
            c = "0" if t == 0 else f"v[{D}:{D+15}]"
            a(f"v_mfma_f32_32x32x16_bf16 v[{D}:{D+15}], v[{b}:{b+3}], v[{BF+4*t}:{BF+4*t+3}], {c}")
    a("s_nop 15"); a("s_nop 7")
    P = [D0+i for i in range(16)] + [D1+i for i in range(4)]
    E = [156+i for i in range(40)]
    OUT = [132+i for i in range(20)]
    softmax_pm(a, P, E, [16,17,18,19,T0,T1], OUT)
    a(f"v_mul_u32_u24 v{T0}, 192, v{ROW}")
    a(f"v_lshl_add_u32 v{T1}, v{KH}, 3, v{T0}")
    a(f"v_add_u32 v{T1}, {L_V}, v{T1}")
    a(f"v_lshl_add_u32 v{T2}, v{KH}, 5, v{T0}")
    a(f"v_add_u32 v{T2}, {L_V+32}, v{T2}")
    a(f"s_cmp_eq_u32 s32, 0")
    a(f"s_cbranch_scc0 K1_E5B")
    a(f"ds_write_b64 v{T1}, v[{VV}:{VV+1}]")
    a(f"ds_write_b64 v{T1}, v[{VV+2}:{VV+3}] offset:16")
    a(f"ds_write_b64 v{T2}, v[{VV+4}:{VV+5}]")
    a(f"s_lshl_b32 s34, s28, 2")
    a(f"s_add_u32 s34, s34, s31")
    a(f"s_lshl_b32 s34, s34, 4")
    a(f"s_add_u32 s34, s34, s29")
    a(f"s_mul_i32 s34, s34, 5120")
    a(f"v_mul_u32_u24 v{T3}, 2560, v{KH}")
    a(f"v_lshl_add_u32 v{T3}, v{L31}, 4, v{T3}")
    for j in range(5):
        a(f"buffer_store_dwordx4 v[{OUT[4*j]}:{OUT[4*j]+3}], v{T3}, s[24:27], s34 offen offset:{512*j}")
    a(f"s_branch K1_E5C")
    a.lab("K1_E5B")
    a(f"ds_write_b64 v{T1}, v[{VV}:{VV+1}] offset:72")
    a(f"ds_write_b64 v{T1}, v[{VV+2}:{VV+3}] offset:88")
    a(f"v_lshl_add_u32 v{T2}, v{KH}, 6, v{T0}")
    a(f"v_add_u32 v{T2}, {L_V+40}, v{T2}")
    a(f"v_mov_b32 v16, 0x3f80"); a(f"v_mov_b32 v17, 0")
    a(f"ds_write_b64 v{T2}, v[16:17]")
    a(f"v_mul_u32_u24 v{T3}, 80, v{KH}")
    a(f"v_add_u32 v{T3}, v{T3}, v{T0}")
    for j in range(5):
        a(f"ds_write_b128 v{T3}, v[{OUT[4*j]}:{OUT[4*j]+3}] offset:{L_PK + 16*j}")
    a(f"s_cmp_lg_u32 s29, 0")
    a(f"s_cbranch_scc1 K1_E5C")
    a(f"v_cmp_gt_u32 vcc, 32, v{LANE}")
    a(f"s_and_saveexec_b64 s[56:57], vcc")
    a(f"s_lshl_b32 s34, s28, 7")
    a(f"v_add_u32 v16, s34, v{ROW}")
    a(f"v_lshlrev_b32 v17, 3, v16")
    a(f"v_mov_b32 v18, v{MB}"); a(f"v_mov_b32 v19, v{RSTD}")
    a(f"buffer_store_dwordx2 v[18:19], v17, s[24:27], 0 offen offset:0" .replace("0 offen offset:0", f"s59 offen") )
    a.l.insert(len(a.l)-1, f"    s_mov_b32 s59, {WS_STATS}")
    a(f"v_cvt_pk_bf16_f32 v18, v{RVAL}, v{RVAL}")
    a(f"v_and_b32 v18, 0xffff, v18")
    a(f"v_and_b32 v19, 0x8000, v18")
    a(f"v_cmp_eq_u32 vcc, 0, v19")
    a(f"v_mov_b32 v19, 0xffff")
    a(f"v_mov_b32 v17, 0x8000")
    a(f"v_cndmask_b32 v19, v19, v17, vcc")
    a(f"v_xor_b32 v18, v18, v19")
    a(f"v_lshlrev_b32 v18, 16, v18")
    a(f"v_sub_u32 v16, 0xffff, v16")
    a(f"v_or_b32 v18, v18, v16")
    a(f"v_mov_b32 v19, {L_KEY}")
    a(f"ds_max_u32 v19, v18")
    a(f"s_mov_b64 exec, s[56:57]")
    a.lab("K1_E5C")
    a("s_waitcnt lgkmcnt(0)")
    a("s_barrier")
    a(f"s_cmp_lg_u32 s29, 0")
    a(f"s_cbranch_scc1 K1_E6")
    a(f"s_cmp_lg_u32 s30, 7")
    a(f"s_cbranch_scc1 K1_E6")
    a(f"v_mov_b32 v19, {L_KEY}")
    a(f"ds_read_b32 v18, v19")
    a(f"s_lshl_b32 s34, s28, 2")
    a(f"s_add_u32 s34, s34, {WS_KEYS}")
    a(f"v_mov_b32 v17, 0")
    a("s_waitcnt lgkmcnt(0)")
    a(f"v_cmp_eq_u32 vcc, 0, v{LANE}")
    a(f"s_and_saveexec_b64 s[56:57], vcc")
    a(f"buffer_store_dword v18, v17, s[24:27], s34 offen")
    a(f"s_mov_b64 exec, s[56:57]")
    a.lab("K1_E6")
    a(f"s_cmp_ge_u32 s30, 4")
    a(f"s_cbranch_scc1 K1_END")
    a(f"s_and_b32 s60, s30, 1")
    a(f"s_lshr_b32 s61, s30, 1")
    a(f"v_lshl_add_u32 v{T0}, v{KH}, 3, v{R4}")
    a(f"v_mul_u32_u24 v{T0}, 192, v{T0}")
    a(f"v_lshl_add_u32 v{T1}, v{MG}, 2, v{C4}")
    a(f"v_lshl_add_u32 v{T0}, v{T1}, 3, v{T0}")
    a(f"s_lshl_b32 s34, s60, 6")
    a(f"s_add_u32 s34, s34, {L_V}")
    a(f"v_add_u32 v{T2}, s34, v{T0}")
    a(f"s_mul_i32 s34, s60, 80")
    a(f"s_lshl_b32 s35, s61, 6")
    a(f"s_add_u32 s34, s34, s35")
    a(f"s_add_u32 s34, s34, {L_PK}")
    a(f"v_add_u32 v{T3}, s34, v{T0}")
    KA=112; KB=144
    for ks in range(8):
        for sec in range(2):
            a(f"ds_read_b64_tr_b16 v[{KA+4*ks+2*sec}:{KA+4*ks+2*sec+1}], v{T2} offset:{ks*3072+sec*768}")
            a(f"ds_read_b64_tr_b16 v[{KB+4*ks+2*sec}:{KB+4*ks+2*sec+1}], v{T3} offset:{ks*3072+sec*768}")
    for ks in range(8):
        a(f"s_waitcnt lgkmcnt({min(15, 4*(7-ks))})")
        c = "0" if ks == 0 else f"v[{D0}:{D0+15}]"
        a(f"v_mfma_f32_32x32x16_bf16 v[{D0}:{D0+15}], v[{KA+4*ks}:{KA+4*ks+3}], v[{KB+4*ks}:{KB+4*ks+3}], {c}")
    a("s_nop 15"); a("s_nop 7")
    a(f"s_lshl_b32 s34, s28, 5")
    a(f"s_lshl_b32 s35, s29, 1")
    a(f"s_add_u32 s34, s34, s35")
    a(f"s_add_u32 s34, s34, s60")
    a(f"s_lshl_b32 s34, s34, 1")
    a(f"s_add_u32 s34, s34, s61")
    a(f"s_mul_i32 s34, s34, 3072")
    a(f"s_add_u32 s34, s34, {WS_KVP}")
    a(f"v_lshlrev_b32 v{T0}, 2, v{LANE}")
    for r in range(12):
        a(f"buffer_store_dword v{D0+r}, v{T0}, s[24:27], s34 offen offset:{256*r}")
    a.lab("K1_END")
    a("s_endpgm")
    return a.text()


K2_LDS = 32768
def unsort_key(a, skey, sidx, srbits):
    a(f"s_and_b32 s{sidx}, s{skey}, 0xffff")
    a(f"s_sub_u32 s{sidx}, 0xffff, s{sidx}")
    a(f"s_lshr_b32 s{srbits}, s{skey}, 16")
    a(f"s_and_b32 s90, s{srbits}, 0x8000")
    a(f"s_cmp_eq_u32 s90, 0")
    a(f"s_mov_b32 s91, 0x8000")
    a(f"s_cselect_b32 s90, 0xffff, s91")
    a(f"s_xor_b32 s{srbits}, s{srbits}, s90")
    a(f"s_lshl_b32 s{srbits}, s{srbits}, 16")

def load_keys_max(a, wsbase, dst):
    a(f"s_add_u32 s80, s{wsbase}, {WS_KEYS}")
    a(f"s_addc_u32 s81, s{wsbase+1}, 0")
    a(f"s_load_dwordx16 s[64:79], s[80:81], 0")
    a("s_waitcnt lgkmcnt(0)")
    a(f"s_max_u32 s{dst}, s64, s65")
    for i in range(66, 80): a(f"s_max_u32 s{dst}, s{dst}, s{i}")

def gen_k2():
    a = A()
    a.lab("k2_kernel")
    a("s_cmp_ge_u32 s2, 272")
    a("s_cbranch_scc1 K2_END")
    a("s_load_dwordx2 s[4:5], s[0:1], 0")
    a("s_load_dwordx2 s[6:7], s[0:1], 24")
    a("s_load_dwordx4 s[8:11], s[0:1], 48")
    a("s_load_dwordx2 s[12:13], s[0:1], 64")
    a("s_load_dwordx2 s[14:15], s[0:1], 88")
    a("v_lshrrev_b32 v1, 6, v0")
    a("v_and_b32 v2, 63, v0")
    a("s_nop 0")
    a("v_readfirstlane_b32 s30, v1")
    a("s_waitcnt lgkmcnt(0)")
    srd(a, 24, 14, WS_BYTES)
    a("s_cmp_ge_u32 s2, 224")
    a("s_cbranch_scc1 K2_MOE")
    a("s_cmp_ge_u32 s2, 24")
    a("s_cbranch_scc1 K2_WO")
    a("s_lshl_b32 s31, s2, 2")
    a("s_add_u32 s31, s31, s30")
    a("s_mul_i32 s32, s31, 43")
    a("s_lshr_b32 s32, s32, 8")
    a("s_mul_i32 s33, s32, 6")
    a("s_sub_u32 s33, s31, s33")
    a("s_cmp_ge_u32 s33, 3")
    a("s_cselect_b32 s34, 1, 0")
    a("s_sub_u32 s35, s33, s34")
    a("s_lshl_b32 s36, s32, 1")
    a("s_add_u32 s36, s36, s34")
    a("v_and_b32 v3, 31, v2")
    a("v_lshrrev_b32 v4, 5, v2")
    a("s_lshl_b32 s37, s35, 1")
    a("v_add_u32 v5, s37, v4")
    a("v_cmp_le_u32 vcc, 5, v5")
    a("v_mov_b32 v6, 0")
    a("s_nop 0")
    a("v_cndmask_b32 v6, v6, 1, vcc")
    a("v_mul_u32_u24 v7, 5, v6")
    a("v_sub_u32 v5, v5, v7")
    a("v_lshlrev_b32 v5, 3, v5")
    a("v_bfe_u32 v7, v3, 2, 1")
    a("v_lshrrev_b32 v8, 3, v3")
    a("v_and_b32 v9, 3, v3")
    a("v_lshl_add_u32 v8, v8, 2, v9")
    a("v_mul_u32_u24 v9, 10, v7")
    a("v_add_u32 v9, v9, v8")
    a("v_cmp_gt_u32 vcc, 10, v8")
    a("v_mov_b32 v10, 20")
    a("s_nop 0")
    a("v_cndmask_b32 v9, v10, v9, vcc")
    a("v_lshrrev_b32 v10, 5, v5")
    a("v_mul_u32_u24 v10, 3072, v10")
    a("v_lshrrev_b32 v11, 3, v9")
    a("v_and_b32 v12, 3, v9")
    a("v_lshl_add_u32 v11, v11, 2, v12")
    a("v_lshl_add_u32 v10, v11, 8, v10")
    a("v_and_b32 v11, 31, v5")
    a("v_bfe_u32 v12, v9, 2, 1")
    a("v_lshl_add_u32 v11, v12, 5, v11")
    a("v_lshl_add_u32 v10, v11, 2, v10")
    a("s_mul_i32 s37, s36, 6144")
    a("v_add_u32 v10, s37, v10")
    a("v_cmp_ne_u32 vcc, s34, v6")
    a("v_cmp_lt_u32 s[40:41], 10, v8")
    a("s_or_b64 vcc, vcc, s[40:41]")
    a("v_mov_b32 v11, 0x7f000000")
    a("s_nop 0")
    a("v_cndmask_b32 v10, v10, v11, vcc")
    for rb in range(16):
        a(f"s_mov_b32 s37, {WS_KVP + rb*196608}")
        a(f"buffer_load_dwordx4 v[{16+8*rb}:{19+8*rb}], v10, s[24:27], s37 offen")
        a(f"buffer_load_dwordx4 v[{20+8*rb}:{23+8*rb}], v10, s[24:27], s37 offen offset:16")
    for rb in range(1, 16):
        a(f"s_waitcnt vmcnt({2*(15-rb)})")
        for i in range(8): a(f"v_add_f32 v{16+i}, v{16+i}, v{16+8*rb+i}")
    for i in range(4): a(f"v_cvt_pk_bf16_f32 v{12+i}, v{16+2*i}, v{17+2*i}")
    a("v_lshlrev_b32 v10, 4, v2")
    a("s_lshl_b32 s37, s31, 10")
    a(f"s_add_u32 s37, s37, {WS_KVF}")
    a("buffer_store_dwordx4 v[12:15], v10, s[24:27], s37 offen")
    a("s_branch K2_END")
    a.lab("K2_WO")
    srd(a, 44, 6, 819200)
    a("s_sub_u32 s31, s2, 24")
    a("s_lshl_b32 s31, s31, 2")
    a("s_add_u32 s31, s31, s30")
    a("s_mul_i32 s32, s31, 41")
    a("s_lshr_b32 s32, s32, 13")
    a("s_mul_i32 s33, s32, 200")
    a("s_sub_u32 s33, s31, s33")
    a("s_mul_i32 s34, s33, 205")
    a("s_lshr_b32 s34, s34, 11")
    a("s_mul_i32 s35, s34, 10")
    a("s_sub_u32 s35, s33, s35")
    a("v_and_b32 v3, 31, v2")
    a("v_lshrrev_b32 v4, 5, v2")
    a("v_mul_u32_u24 v4, 12800, v4")
    a("s_lshl_b32 s36, s34, 6")
    a("v_lshl_add_u32 v3, v3, 1, v4")
    a("v_add_u32 v3, s36, v3")
    for j in range(8):
        a(f"s_lshl_b32 s37, s35, 3")
        a(f"s_add_u32 s37, s37, {j}")
        a(f"s_mul_i32 s38, s37, 205")
        a(f"s_lshr_b32 s38, s38, 11")
        a(f"s_mul_i32 s39, s38, 10")
        a(f"s_sub_u32 s39, s37, s39")
        a(f"s_lshl_b32 s40, s32, 3")
        a(f"s_add_u32 s40, s40, s38")
        a(f"s_mul_i32 s40, s40, 20")
        a(f"s_add_u32 s40, s40, s39")
        a(f"s_mul_i32 s40, s40, 1280")
        a(f"buffer_load_ushort v{20+j}, v3, s[44:47], s40 offen")
    a("v_lshlrev_b32 v16, 4, v2")
    a("s_lshl_b32 s37, s31, 10")
    a(f"s_add_u32 s37, s37, {WS_WOF}")
    a("s_waitcnt vmcnt(0)")
    for i in range(4): a(f"v_lshl_or_b32 v{8+i}, v{21+2*i}, 16, v{20+2*i}")
    a("buffer_store_dwordx4 v[8:11], v16, s[24:27], s37 offen")
    a("s_branch K2_END")
    a.lab("K2_MOE")
    a("s_sub_u32 s93, s2, 224")
    a("s_mov_b32 s92, s30")
    srd(a, 28, 8, 1966080)
    srd(a, 32, 10, 1966080)
    srd(a, 36, 12, 1966080)
    srd(a, 40, 4, 2621440)
    a("v_lshrrev_b32 v3, 2, v0")
    a("v_and_b32 v4, 3, v0")
    a("v_mul_u32_u24 v5, 3072, v3")
    a("v_lshl_add_u32 v5, v4, 4, v5")
    a("s_lshl_b32 s44, s93, 6")
    a("v_add_u32 v5, s44, v5")
    GW=32; UW=72; DW=112
    for i in range(10):
        a(f"s_mov_b32 s45, {i*196608}")
        a(f"buffer_load_dwordx4 v[{GW+4*i}:{GW+4*i+3}], v5, s[28:31], s45 offen")
        a(f"buffer_load_dwordx4 v[{UW+4*i}:{UW+4*i+3}], v5, s[32:35], s45 offen")
    a("v_mul_u32_u24 v6, 205, v0")
    a("v_lshrrev_b32 v6, 14, v6")
    a("v_mul_u32_u24 v7, 80, v6")
    a("v_sub_u32 v7, v0, v7")
    a("s_lshl_b32 s44, s93, 5")
    a("v_add_u32 v8, s44, v6")
    a("v_mul_u32_u24 v8, 1280, v8")
    a("v_lshl_add_u32 v8, v7, 4, v8")
    a("v_cmp_gt_u32 vcc, 3, v6")
    a("v_mov_b32 v9, 0x7f000000")
    a("s_nop 0")
    a("v_cndmask_b32 v8, v9, v8, vcc")
    a("v_cmp_gt_u32 vcc, 2, v6")
    a("s_nop 1")
    a("v_cndmask_b32 v10, v9, v8, vcc")
    for i in range(11):
        a(f"s_mov_b32 s45, {i*3*1280}")
        a(f"buffer_load_dwordx4 v[{DW+4*i}:{DW+4*i+3}], v{8 if i < 10 else 10}, s[36:39], s45 offen")
    load_keys_max(a, 14, 46)
    unsort_key(a, 46, 47, 48)
    a(f"s_lshl_b32 s49, s47, 3")
    a(f"s_add_u32 s49, s49, {WS_STATS}")
    a(f"s_add_u32 s80, s14, s49")
    a(f"s_addc_u32 s81, s15, 0")
    a(f"s_load_dwordx2 s[50:51], s[80:81], 0")
    a(f"s_mul_i32 s52, s47, 1280")
    a("v_lshlrev_b32 v11, 4, v0")
    a("v_cmp_gt_u32 vcc, 80, v0")
    a("s_and_saveexec_b64 s[56:57], vcc")
    a("buffer_load_dwordx4 v[12:15], v11, s[40:43], s52 offen")
    a("s_waitcnt vmcnt(0) lgkmcnt(0)")
    for i in range(4):
        a(f"v_lshlrev_b32 v{16+2*i}, 16, v{12+i}")
        a(f"v_and_b32 v{17+2*i}, 0xffff0000, v{12+i}")
    for i in range(8):
        a(f"v_subrev_f32 v{16+i}, s50, v{16+i}")
        round_bf16(a, 16+i)
        a(f"v_mul_f32 v{16+i}, s51, v{16+i}")
        round_bf16(a, 16+i)
    a("v_lshlrev_b32 v11, 5, v0")
    a("ds_write_b128 v11, v[16:19]")
    a("ds_write_b128 v11, v[20:23] offset:16")
    a("s_mov_b64 exec, s[56:57]")
    a("s_waitcnt vmcnt(0) lgkmcnt(0)")
    a("s_barrier")
    a("v_lshlrev_b32 v11, 2, v3")
    for i in range(10): a(f"ds_read_b32 v{12+i}, v11 offset:{256*i}")
    AG=160; AU=168
    for i in range(16): a(f"v_mov_b32 v{AG+i}, 0")
    a("s_waitcnt lgkmcnt(0)")
    for i in range(10):
        for (W, ACC) in ((GW, AG), (UW, AU)):
            for d in range(4):
                a(f"v_lshlrev_b32 v22, 16, v{W+4*i+d}")
                a(f"v_and_b32 v23, 0xffff0000, v{W+4*i+d}")
                a(f"v_fmac_f32 v{ACC+2*d}, v22, v{12+i}")
                a(f"v_fmac_f32 v{ACC+2*d+1}, v23, v{12+i}")
    RED=4096
    a("v_lshlrev_b32 v11, 2, v0")
    for v in range(16): a(f"ds_write_b32 v11, v{AG+v} offset:{RED + v*1040}")
    a("s_waitcnt lgkmcnt(0)")
    a("s_barrier")
    a("v_lshrrev_b32 v12, 5, v2")
    a("v_and_b32 v13, 7, v2")
    a("v_lshl_add_u32 v12, v12, 3, v13")
    a("v_mul_u32_u24 v12, 1040, v12")
    a("v_bfe_u32 v13, v2, 3, 2")
    a("v_lshl_add_u32 v12, v13, 2, v12")
    a("s_lshl_b32 s44, s92, 8")
    a("v_add_u32 v12, s44, v12")
    for i in range(16): a(f"ds_read_b32 v{16+i}, v12 offset:{RED + 16*i}")
    a("s_waitcnt lgkmcnt(0)")
    for i in range(1, 16): a(f"v_add_f32 v16, v16, v{16+i}")
    RED2=24576
    a("v_lshlrev_b32 v11, 2, v0")
    a(f"ds_write_b32 v11, v16 offset:{RED2}")
    a("s_waitcnt lgkmcnt(0)")
    a("s_barrier")
    HB=26624
    a("v_cmp_gt_u32 vcc, 32, v0")
    a("s_and_saveexec_b64 s[56:57], vcc")
    for q in range(4):
        a(f"ds_read_b32 v{16+q}, v11 offset:{RED2 + 256*q}")
        a(f"ds_read_b32 v{20+q}, v11 offset:{RED2 + 256*q + 128}")
    a("s_waitcnt lgkmcnt(0)")
    a("v_add_f32 v16, v16, v17"); a("v_add_f32 v18, v18, v19"); a("v_add_f32 v16, v16, v18")
    a("v_add_f32 v20, v20, v21"); a("v_add_f32 v22, v22, v23"); a("v_add_f32 v20, v20, v22")
    round_bf16(a, 16); round_bf16(a, 20)
    a(f"s_mov_b32 s60, 0x{LOG2E:x}")
    a("v_mul_f32 v17, s60, v16")
    a("v_exp_f32 v17, -v17")
    a("s_nop 0")
    a("v_add_f32 v17, 1.0, v17")
    a("v_rcp_f32 v17, v17")
    a("s_nop 0")
    a("v_mul_f32 v16, v16, v17")
    round_bf16(a, 16)
    a("v_mul_f32 v16, v16, v20")
    round_bf16(a, 16)
    a(f"ds_write_b32 v11, v16 offset:{HB}")
    a("s_mov_b64 exec, s[56:57]")
    a("s_waitcnt lgkmcnt(0)")
    a("s_barrier")
    a("v_lshlrev_b32 v11, 2, v6")
    for i in range(11): a(f"ds_read_b32 v{12+i}, v11 offset:{HB + 12*i}")
    for i in range(8): a(f"v_mov_b32 v{AG+i}, 0")
    a("s_waitcnt lgkmcnt(0)")
    a("v_cmp_gt_u32 vcc, 2, v6")
    a("s_nop 1")
    a("v_cndmask_b32 v22, 0, v22, vcc")
    a("v_cmp_gt_u32 vcc, 3, v6")
    a("s_nop 1")
    for i in range(10): a(f"v_cndmask_b32 v{12+i}, 0, v{12+i}, vcc")
    for i in range(11):
        for d in range(4):
            a(f"v_lshlrev_b32 v24, 16, v{DW+4*i+d}")
            a(f"v_and_b32 v25, 0xffff0000, v{DW+4*i+d}")
            a(f"v_fmac_f32 v{AG+2*d}, v24, v{12+i}")
            a(f"v_fmac_f32 v{AG+2*d+1}, v25, v{12+i}")
    RED3=4096
    a("v_lshlrev_b32 v11, 5, v0")
    a(f"ds_write_b128 v11, v[{AG}:{AG+3}] offset:{RED3}")
    a(f"ds_write_b128 v11, v[{AG+4}:{AG+7}] offset:{RED3+16}")
    a("s_waitcnt lgkmcnt(0)")
    a("s_barrier")
    a("v_cmp_gt_u32 vcc, 160, v0")
    a("s_and_saveexec_b64 s[56:57], vcc")
    a("v_lshlrev_b32 v11, 4, v0")
    for q in range(3): a(f"ds_read_b128 v[{16+4*q}:{19+4*q}], v11 offset:{RED3 + 2560*q}")
    a("s_waitcnt lgkmcnt(0)")
    for i in range(4):
        a(f"v_add_f32 v{16+i}, v{16+i}, v{20+i}")
        a(f"v_add_f32 v{16+i}, v{16+i}, v{24+i}")
    a("s_mul_i32 s44, s93, 2560")
    a(f"s_add_u32 s44, s44, {WS_YP}")
    a("buffer_store_dwordx4 v[16:19], v11, s[24:27], s44 offen")
    a.lab("K2_END")
    a("s_endpgm")
    return a.text()


K3_Y2 = 0
K3_PB = 1024
K3_LDS = 4*32*656 + 1024
def gen_k3():
    a = A()
    a.lab("k3_kernel")
    a("s_cmp_ge_u32 s2, 256")
    a("s_cbranch_scc1 K3_END")
    a("s_load_dwordx2 s[4:5], s[0:1], 0")
    a("s_load_dwordx2 s[6:7], s[0:1], 72")
    a("s_load_dwordx2 s[14:15], s[0:1], 88")
    a("v_lshrrev_b32 v1, 6, v0")
    a("v_and_b32 v2, 63, v0")
    a("s_nop 0")
    a("v_readfirstlane_b32 s30, v1")
    a("s_and_b32 s31, s2, 7")
    a("s_lshr_b32 s32, s2, 3")
    a("s_and_b32 s33, s32, 3")
    a("s_lshr_b32 s32, s32, 2")
    a("s_lshl_b32 s31, s31, 3")
    a("s_add_u32 s34, s31, s32")
    a("s_waitcnt lgkmcnt(0)")
    srd(a, 24, 14, WS_BYTES)
    srd(a, 16, 4, 2621440)
    srd(a, 20, 6, 2621440)
    a("v_lshlrev_b32 v3, 4, v2")
    ES=[8,9,10,11,12]; EU=[13,14,15,16,17]; EO=[18,19,20,21,22]
    XV=24; SV=34
    a("s_lshl_b32 s35, s34, 5")
    a("s_mul_i32 s36, s33, 320")
    a(f"s_mov_b32 s37, {WS_STATS}")
    for q in range(5):
        a(f"v_add_u32 v4, {256*q}, v0")
        a(f"v_mul_u32_u24 v{ES[q]}, 1639, v4")
        a(f"v_lshrrev_b32 v{ES[q]}, 16, v{ES[q]}")
        a(f"v_mul_u32_u24 v5, 40, v{ES[q]}")
        a(f"v_sub_u32 v{EU[q]}, v4, v5")
        a(f"v_add_u32 v{ES[q]}, s35, v{ES[q]}")
        a(f"v_mul_u32_u24 v6, 1280, v{ES[q]}")
        a(f"v_lshl_add_u32 v6, v{EU[q]}, 3, v6")
        a(f"v_add_u32 v{EO[q]}, s36, v6")
        a(f"buffer_load_dwordx2 v[{XV+2*q}:{XV+2*q+1}], v{EO[q]}, s[16:19], 0 offen")
        a(f"v_lshlrev_b32 v5, 3, v{ES[q]}")
        a(f"buffer_load_dwordx2 v[{SV+2*q}:{SV+2*q+1}], v5, s[24:27], s37 offen")
    a("s_lshl_b32 s37, s34, 4")
    a("s_lshl_b32 s38, s30, 2")
    a("s_add_u32 s37, s37, s38")
    a("s_mul_i32 s37, s37, 5120")
    a("s_mul_i32 s38, s30, 24576")
    a(f"s_add_u32 s38, s38, {WS_KVF}")
    a("s_mul_i32 s39, s30, 200")
    a("s_mul_i32 s40, s33, 50")
    a("s_add_u32 s39, s39, s40")
    a("s_lshl_b32 s39, s39, 10")
    a(f"s_add_u32 s39, s39, {WS_WOF}")
    def ld(base, sbase, off):
        hi, lo = off // 4096 * 4096, off % 4096
        a(f"s_add_u32 s41, s{sbase}, {hi}")
        a(f"buffer_load_dwordx4 a[{base}:{base+3}], v3, s[24:27], s41 offen offset:{lo}")
    for pl in range(4):
        for t in range(5): ld(20*pl+4*t, 37, (pl*5+t)*1024)
        for fi in range(6): ld(80+24*pl+4*fi, 38, (pl*6+fi)*1024)
    def woreg(wi):
        if wi < 20: return 176+4*wi
        j = wi - 20; pl, r = j // 11, j % 11
        return 20*pl + 4*r if r < 5 else 80 + 24*pl + 4*(r-5)
    def ldw(wi):
        t2, k = wi // 5, wi % 5
        ld(woreg(wi), 39, (k*10+t2)*1024)
    for wi in range(9): ldw(wi)
    load_keys_max(a, 14, 46)
    unsort_key(a, 46, 47, 48)
    D=[[44, 60], [76, 92]]
    OF=108; ACC=148; TT=228
    def p1_mfma(pl):
        Da, Db = D[pl & 1]
        for (Dx, f0, t0) in ((Da, 0, 0), (Db, 3, 2)):
            for i in range(3):
                A_ = 80+24*pl+4*(f0+i); B_ = 20*pl+4*(t0+i)
                c = "0" if i == 0 else f"v[{Dx}:{Dx+15}]"
                a(f"v_mfma_f32_32x32x16_bf16 v[{Dx}:{Dx+15}], a[{A_}:{A_+3}], a[{B_}:{B_+3}], {c}")
    def p1_valu(pl):
        for hh, Dx in enumerate(D[pl & 1]):
            hl = 2*pl + hh
            a(f"v_add_f32 v{TT}, 0x358637bd, v{Dx+10}")
            a(f"v_rcp_f32 v{TT}, v{TT}")
            a("s_nop 0")
            for i in range(10): a(f"v_mul_f32 v{Dx+i}, v{Dx+i}, v{TT}")
            for i in range(5): a(f"v_cvt_pk_bf16_f32 v{OF+5*hl+i}, v{Dx+2*i}, v{Dx+2*i+1}")
    a("s_waitcnt vmcnt(42)")
    p1_mfma(0)
    for wi in range(9, 20): ldw(wi)
    a("s_waitcnt vmcnt(42)")
    p1_mfma(1)
    for wi in range(20, 31): ldw(wi)
    p1_valu(0)
    a("s_waitcnt vmcnt(42)")
    p1_mfma(2)
    for wi in range(31, 42): ldw(wi)
    p1_valu(1)
    a("s_waitcnt vmcnt(42)")
    p1_mfma(3)
    for wi in range(42, 50): ldw(wi)
    p1_valu(2)
    a("s_nop 7")
    p1_valu(3)
    a("s_nop 1")
    for t2 in range(10):
        a(f"s_waitcnt vmcnt({45-5*t2})")
        for k in range(5):
            A_ = woreg(5*t2+k)
            c = "0" if t2 == 0 else f"v[{ACC+16*k}:{ACC+16*k+15}]"
            a(f"v_mfma_f32_32x32x16_bf16 v[{ACC+16*k}:{ACC+16*k+15}], a[{A_}:{A_+3}], v[{OF+4*t2}:{OF+4*t2+3}], {c}")
    a("s_lshr_b32 s49, s47, 5")
    a("s_cmp_lg_u32 s49, s34")
    a("s_cbranch_scc1 K3_NOY")
    a("v_cmp_gt_u32 vcc, 160, v0")
    a("s_and_saveexec_b64 s[56:57], vcc")
    a("v_lshlrev_b32 v4, 2, v0")
    a("s_mul_i32 s50, s33, 640")
    a(f"s_add_u32 s50, s50, {WS_YP}")
    for j in range(48):
        a(f"s_add_u32 s51, s50, {j*2560}")
        a(f"buffer_load_dword v{44+j}, v4, s[24:27], s51 offen")
    a("s_waitcnt vmcnt(0)")
    for j in range(1, 48): a(f"v_add_f32 v44, v44, v{44+j}")
    round_bf16(a, 44)
    a(f"s_mov_b32 s60, 0x{LOG2E:x}")
    a("v_mov_b32 v45, s48")
    a("v_mul_f32 v45, s60, v45")
    a("v_exp_f32 v45, -v45")
    a("s_nop 0")
    a("v_add_f32 v45, 1.0, v45")
    a("v_rcp_f32 v45, v45")
    a("s_nop 0")
    round_bf16(a, 45)
    a("v_mul_f32 v44, v44, v45")
    round_bf16(a, 44)
    a(f"ds_write_b32 v4, v44 offset:{K3_Y2}")
    a("s_mov_b64 exec, s[56:57]")
    a.lab("K3_NOY")
    a("s_nop 15"); a("s_nop 7")
    a("v_and_b32 v4, 31, v2")
    a("v_mul_u32_u24 v4, 656, v4")
    a("v_lshrrev_b32 v5, 5, v2")
    a("v_lshl_add_u32 v4, v5, 4, v4")
    a("s_mul_i32 s50, s30, 20992")
    a(f"s_add_u32 s50, s50, {K3_PB}")
    a("v_add_u32 v4, s50, v4")
    for k in range(5):
        for g in range(4):
            a(f"ds_write_b128 v4, v[{ACC+16*k+4*g}:{ACC+16*k+4*g+3}] offset:{(8*k+2*g)*16}")
    a("s_waitcnt vmcnt(0) lgkmcnt(0)")
    a("s_barrier")
    for q in range(5):
        a(f"v_subrev_u32 v4, s35, v{ES[q]}")
        a(f"v_mul_u32_u24 v4, 656, v4")
        a(f"v_lshl_add_u32 v4, v{EU[q]}, 4, v4")
        for w in range(4):
            a(f"ds_read_b128 v[{44+4*w}:{47+4*w}], v4 offset:{K3_PB + w*20992}")
        a(f"v_lshlrev_b32 v5, 4, v{EU[q]}")
        a(f"ds_read_b128 v[60:63], v5 offset:{K3_Y2}")
        a("s_waitcnt lgkmcnt(0)")
        for i in range(4):
            a(f"v_add_f32 v{44+i}, v{44+i}, v{48+i}")
            a(f"v_add_f32 v{52+i}, v{52+i}, v{56+i}")
            a(f"v_add_f32 v{44+i}, v{44+i}, v{52+i}")
        a(f"v_lshlrev_b32 v64, 16, v{XV+2*q}")
        a(f"v_and_b32 v65, 0xffff0000, v{XV+2*q}")
        a(f"v_lshlrev_b32 v66, 16, v{XV+2*q+1}")
        a(f"v_and_b32 v67, 0xffff0000, v{XV+2*q+1}")
        a(f"v_cmp_eq_u32 vcc, s47, v{ES[q]}")
        for i in range(4):
            round_bf16(a, 44+i)
            a(f"v_add_f32 v{44+i}, v{64+i}, v{44+i}")
            round_bf16(a, 44+i)
            a(f"v_sub_f32 v{64+i}, v{64+i}, v{SV+2*q}")
            round_bf16(a, 64+i)
            a(f"v_mul_f32 v{64+i}, v{64+i}, v{SV+2*q+1}")
            round_bf16(a, 64+i)
            a(f"v_cndmask_b32 v{60+i}, 0, v{60+i}, vcc")
            a(f"v_add_f32 v{64+i}, v{64+i}, v{60+i}")
            round_bf16(a, 64+i)
            a(f"v_add_f32 v{44+i}, v{44+i}, v{64+i}")
        a(f"v_cvt_pk_bf16_f32 v{68+2*q}, v44, v45")
        a(f"v_cvt_pk_bf16_f32 v{69+2*q}, v46, v47")
        a(f"buffer_store_dwordx2 v[{68+2*q}:{69+2*q}], v{EO[q]}, s[20:23], 0 offen")
    a.lab("K3_END")
    a("s_endpgm")
    return a.text()

def header(launches):
    h = []
    for (k, g, b, lds) in launches:
        h.append(f"; @launch kernel={k} grid=({g},1,1) block=({b},1,1) lds={lds}")
    return "\n".join(h) + "\n"

def build(kernels):
    s = "; generated by work/gen.py\n"
    s += header([(k[0], k[3], k[4], k[5]) for k in kernels])
    s += '.amdgcn_target "amdgcn-amd-amdhsa--gfx950"\n.text\n'
    for k in kernels:
        s += f".globl {k[0]}\n.p2align 8\n.type {k[0]},@function\n" + k[1]
    s += '.section .rodata,"a"\n'
    for k in kernels:
        s += ".p2align 6\n" + kdesc(k[0], k[2], accum=k[6])
    return s

if __name__ == "__main__":
    ks = [("k1_kernel", gen_k1(), 200, 256, 512, K1_LDS, None),
          ("k2_kernel", gen_k2(), 180, 272, 256, K2_LDS, None),
          ("k3_kernel", gen_k3(), 512, 256, 256, K3_LDS, 256)]
    out = sys.argv[1] if len(sys.argv) > 1 else "all.s"
    open(out, "w").write(build(ks))
```

```python
import sys

WS_PHIQ  = 0x000000
WS_KVP   = 0x500000
WS_STATS = 0x800000
WS_KEYS  = 0x804000
WS_KVF   = 0x810000
WS_WOF   = 0x830000
WS_YP    = 0x900000
WS_MOE   = 0x920000
WS_BYTES = 0x1000000

class A:
    def __init__(self): self.l = []
    def __call__(self, s): self.l.append("    " + s)
    def lab(self, s): self.l.append(s + ":")
    def c(self, s): self.l.append("    ; " + s)
    def text(self): return "\n".join(self.l) + "\n"

NAME = "parallel_sum__linear_kernel_hedgehog__moe_arch_mod__prompt"

def kdesc(name, vgpr, sgpr=102, accum=None):
    accum = accum or ((vgpr + 3) // 4 * 4)
    return f""".amdhsa_kernel {name}
  .amdhsa_next_free_vgpr {vgpr}
  .amdhsa_next_free_sgpr {sgpr}
  .amdhsa_accum_offset {accum}
  .amdhsa_group_segment_fixed_size 0
  .amdhsa_kernarg_size 96
  .amdhsa_user_sgpr_count 2
  .amdhsa_user_sgpr_kernarg_segment_ptr 1
  .amdhsa_system_sgpr_workgroup_id_x 1
.end_amdhsa_kernel
"""

def srd(a, d, base, nbytes):
    a(f"s_mov_b32 s{d}, s{base}")
    a(f"s_and_b32 s{d+1}, s{base+1}, 0xffff")
    a(f"s_mov_b32 s{d+2}, {nbytes}")
    a(f"s_mov_b32 s{d+3}, 0x00020000")

def round_bf16(a, v):
    a(f"v_cvt_pk_bf16_f32 v{v}, v{v}, v{v}")
    a(f"v_lshlrev_b32 v{v}, 16, v{v}")

LOG2E = 0x3fb8aa3b
STAMPS = False
WS_DBG = 0xA00000
class Stamper:
    def __init__(self, a): self.a = a; self.n = 0
    def __call__(self):
        if not STAMPS: return
        a = self.a
        a(f"s_memrealtime s[82:83]")
        a("s_waitcnt lgkmcnt(0)")
        a(f"s_mov_b32 s{84+self.n}, s82")
        self.n += 1
    def flush(self, kidx, wave_sgpr, srd=24):
        if not STAMPS: return
        a = self.a
        a(f"s_lshl_b32 s82, s2, 3")
        a(f"s_add_u32 s82, s82, s{wave_sgpr}")
        a(f"s_lshl_b32 s82, s82, 6")
        a(f"s_add_u32 s82, s82, {WS_DBG + kidx*0x80000}")
        a(f"v_mov_b32 v250, 0")
        for i in range(self.n):
            a(f"v_mov_b32 v251, s{84+i}")
            a(f"buffer_store_dword v251, v250, s[{srd}:{srd+3}], s82 offen offset:{4*i}")

K1_LDS = 143360
L_W = 0; L_X = 65536; L_PHI = 131072; L_SQ = 137216; L_RS = 139264; L_RR = 139776; L_CSP = 140288; L_KEY = 142336
L_PK = 0; L_V = 32768

def softmax_pm(a, P, E, TMP, OUT):
    mx, mn, s0, s1, t0, t1 = TMP[:6]
    a(f"v_max3_f32 v{mx}, v{P[0]}, v{P[1]}, v{P[2]}")
    a(f"v_min3_f32 v{mn}, v{P[0]}, v{P[1]}, v{P[2]}")
    for i in range(3, 19, 2):
        a(f"v_max3_f32 v{mx}, v{mx}, v{P[i]}, v{P[i+1]}")
        a(f"v_min3_f32 v{mn}, v{mn}, v{P[i]}, v{P[i+1]}")
    a(f"v_max_f32 v{mx}, v{mx}, v{P[19]}")
    a(f"v_min_f32 v{mn}, v{mn}, v{P[19]}")
    a(f"s_mov_b32 s60, 0x{LOG2E:x}")
    a(f"v_mul_f32 v{mx}, s60, v{mx}")
    a(f"v_mul_f32 v{mn}, s60, v{mn}")
    for i in range(20):
        a(f"v_fma_f32 v{E[i]}, v{P[i]}, s60, -v{mx}")
        a(f"v_fma_f32 v{E[20+i]}, -v{P[i]}, s60, v{mn}")
    for i in range(40):
        a(f"v_exp_f32 v{E[i]}, v{E[i]}")
    a("s_nop 0")
    for base, s, t in ((0, s0, t0), (20, s1, t1)):
        a(f"v_add_f32 v{s}, v{E[base]}, v{E[base+1]}")
        a(f"v_add_f32 v{t}, v{E[base+2]}, v{E[base+3]}")
        for i in range(4, 20, 2):
            a(f"v_add_f32 v{s}, v{s}, v{E[base+i]}")
            a(f"v_add_f32 v{t}, v{t}, v{E[base+i+1]}")
        a(f"v_add_f32 v{s}, v{s}, v{t}")
    a(f"v_rcp_f32 v{s0}, v{s0}")
    a(f"v_rcp_f32 v{s1}, v{s1}")
    a("s_nop 0")
    for i in range(20):
        a(f"v_mul_f32 v{E[i]}, v{E[i]}, v{s0}")
        a(f"v_mul_f32 v{E[20+i]}, v{E[20+i]}, v{s1}")
    for i in range(20):
        a(f"v_cvt_pk_bf16_f32 v{OUT[i]}, v{E[2*i]}, v{E[2*i+1]}")

def gen_k1():
    a = A()
    a.lab("k1_kernel")
    a("s_cmp_ge_u32 s2, 256")
    a("s_cbranch_scc1 K1_END")
    a("s_load_dwordx4 s[4:7], s[0:1], 0")
    a("s_load_dwordx2 s[8:9], s[0:1], 16")
    a("s_load_dwordx2 s[10:11], s[0:1], 40")
    a("s_load_dwordx2 s[12:13], s[0:1], 88")
    a("s_and_b32 s14, s2, 7")
    a("s_lshr_b32 s15, s2, 3")
    a("s_and_b32 s28, s14, 1")
    a("s_lshl_b32 s28, s28, 3")
    a("s_and_b32 s29, s15, 7")
    a("s_add_u32 s28, s28, s29")
    a("s_lshr_b32 s29, s14, 1")
    a("s_lshl_b32 s29, s29, 2")
    a("s_lshr_b32 s15, s15, 3")
    a("s_add_u32 s29, s29, s15")
    a("v_lshrrev_b32 v1, 6, v0")
    a("v_and_b32 v2, 63, v0")
    a("s_nop 0")
    a("v_readfirstlane_b32 s30, v1")
    a("s_nop 3")
    a("s_and_b32 s31, s30, 3")
    a("s_lshr_b32 s32, s30, 2")
    a("s_add_u32 s58, s31, s32")
    a("s_and_b32 s58, s58, 3")
    st = Stamper(a); st()
    LANE=2; L31=3; KH=4; R4=5; C4=6; MG=7
    a(f"v_and_b32 v{L31}, 31, v{LANE}")
    a(f"v_lshrrev_b32 v{KH}, 5, v{LANE}")
    a(f"v_bfe_u32 v{R4}, v{LANE}, 2, 2")
    a(f"v_and_b32 v{C4}, 3, v{LANE}")
    a(f"v_bfe_u32 v{MG}, v{LANE}, 4, 1")
    XLD0=8; XLD1=9; WLD=10
    T0=11; T1=12; T2=13; T3=14
    a(f"s_lshl_b32 s33, s31, 5")
    a(f"s_lshl_b32 s34, s32, 4")
    a(f"s_add_u32 s33, s33, s34")
    a(f"v_lshrrev_b32 v{T0}, 3, v{LANE}")
    a(f"v_add_u32 v{T0}, s33, v{T0}")
    a(f"s_movk_i32 s34, 1280")
    a(f"v_mul_lo_u32 v{T0}, v{T0}, s34")
    a(f"v_and_b32 v{T1}, 7, v{LANE}")
    a(f"v_lshrrev_b32 v{T2}, 4, v{LANE}")
    a(f"v_xor_b32 v{T1}, v{T1}, v{T2}")
    a(f"v_lshl_add_u32 v{XLD0}, v{T1}, 4, v{T0}")
    a(f"v_xor_b32 v{T1}, 4, v{T1}")
    a(f"v_lshl_add_u32 v{XLD1}, v{T1}, 4, v{T0}")
    a(f"v_add_u32 v{XLD1}, {8*1280}, v{XLD1}")
    a(f"v_and_b32 v{T1}, 15, v{LANE}")
    a(f"v_lshlrev_b32 v{T3}, 2, v{T2}")
    a(f"v_sub_u32 v{T1}, v{T1}, v{T3}")
    a(f"v_and_b32 v{T1}, 15, v{T1}")
    a(f"v_lshlrev_b32 v{T1}, 2, v{T1}")
    chunkT = [0,1,3,4, 2,0,1,2, 0,1,3,4, 2,3,4,0]
    typeT  = [0,0,0,0, 0,2,2,2, 1,1,1,1, 1,2,2,0]
    ct = sum(v << (4*i) for i, v in enumerate(chunkT)); tt = sum(v << (4*i) for i, v in enumerate(typeT))
    a(f"s_mov_b32 s36, 0x{ct & 0xffffffff:x}")
    a(f"s_mov_b32 s37, 0x{ct >> 32:x}")
    a(f"s_mov_b32 s38, 0x{tt & 0xffffffff:x}")
    a(f"s_mov_b32 s39, 0x{tt >> 32:x}")
    a(f"v_lshrrev_b64 v[16:17], v{T1}, s[36:37]")
    a(f"v_lshrrev_b64 v[18:19], v{T1}, s[38:39]")
    a(f"v_and_b32 v16, 15, v16")
    a(f"v_and_b32 v18, 15, v18")
    a(f"s_movk_i32 s34, 1280")
    a(f"v_mul_lo_u32 v18, v18, s34")
    a(f"v_lshl_add_u32 v16, v16, 4, v18")
    a(f"s_mul_i32 s35, s29, 80")
    a(f"v_add_u32 v16, s35, v16")
    a(f"s_lshl_b32 s35, s30, 3")
    a(f"v_add_u32 v{T2}, s35, v{T2}")
    a(f"s_movk_i32 s34, 3840")
    a(f"v_mul_lo_u32 v{T2}, v{T2}, s34")
    a(f"v_add_u32 v{WLD}, v{T2}, v16")
    a("s_waitcnt lgkmcnt(0)")
    srd(a, 16, 4, 2621440)
    srd(a, 20, 6, 2457600)
    srd(a, 24, 12, WS_BYTES)
    srd(a, 40, 8, 25600)
    srd(a, 44, 10, 1280)
    WPHI=15
    a(f"s_mul_i32 s34, s29, 1600")
    a(f"v_lshlrev_b32 v{T0}, 2, v0")
    a(f"buffer_load_dword v{WPHI}, v{T0}, s[40:43], s34 offen")
    WR=100
    a(f"v_lshlrev_b32 v{T0}, 1, v{LANE}")
    for kt in range(10):
        a(f"buffer_load_ushort v{WR+kt}, v{T0}, s[44:47], 0 offen offset:{128*kt}")
    a(f"s_mul_i32 s48, s28, {128*1280}")
    a(f"s_lshl_b32 s49, s33, 7")
    a(f"s_add_u32 s49, s49, {L_X}")
    a(f"s_lshl_b32 s50, s30, 11")
    a(f"s_add_u32 s50, s50, {L_W}")
    mask = ((1 << 64) - 1) & ~((1 << 15) | (1 << 19) | (1 << 39) | (1 << 59))
    a(f"s_mov_b32 s52, 0x{mask & 0xffffffff:x}")
    a(f"s_mov_b32 s53, 0x{mask >> 32:x}")
    def dma(kt):
        st = kt % 4
        a(f"s_add_u32 s54, s48, {kt*128}")
        a(f"s_add_u32 m0, s49, {st*16384}")
        a(f"s_nop 0")
        a(f"buffer_load_dwordx4 v{XLD0}, s[16:19], s54 offen lds")
        a(f"s_add_u32 m0, s49, {st*16384+1024}")
        a(f"s_nop 0")
        a(f"buffer_load_dwordx4 v{XLD1}, s[16:19], s54 offen lds")
        a(f"s_mov_b64 exec, s[52:53]")
        a(f"s_mov_b32 s55, {kt*64*3840}")
        a(f"s_add_u32 m0, s50, {st*16384}")
        a(f"s_nop 0")
        a(f"buffer_load_dwordx4 v{WLD}, s[20:23], s55 offen lds")
        a(f"s_mov_b32 s55, {(kt*64+4)*3840}")
        a(f"s_add_u32 m0, s50, {st*16384+1024}")
        a(f"s_nop 0")
        a(f"buffer_load_dwordx4 v{WLD}, s[20:23], s55 offen lds")
        a(f"s_mov_b64 exec, -1")
    for kt in range(3): dma(kt)
    XRD=[20,21,22,23]; ARD=[[24,25,26,27],[28,29,30,31]]; PADW=32; G=33; HF=34
    a(f"s_lshl_b32 s34, s31, 5")
    a(f"v_add_u32 v{T0}, s34, v{L31}")
    a(f"v_bfe_u32 v{T1}, v{T0}, 1, 3")
    a(f"v_xor_b32 v{T1}, v{T1}, v{KH}")
    a(f"v_lshlrev_b32 v{T0}, 7, v{T0}")
    a(f"v_lshl_add_u32 v{T0}, v{T1}, 4, v{T0}")
    a(f"v_add_u32 v{T0}, {L_X}, v{T0}")
    for i in range(4):
        a(f"s_add_u32 s34, s58, {i}")
        a(f"s_and_b32 s34, s34, 3")
        a(f"s_lshl_b32 s{60+i}, s34, 12")
        a(f"s_lshl_b32 s34, s34, 5")
        a(f"v_xor_b32 v{XRD[i]}, s34, v{T0}")
    a(f"v_lshl_add_u32 v{T0}, v{MG}, 2, v{C4}")
    a(f"v_lshrrev_b32 v{G}, 1, v{T0}")
    a(f"v_and_b32 v{HF}, 1, v{T0}")
    a(f"v_lshl_add_u32 v{T0}, v{KH}, 3, v{R4}")
    a(f"v_lshlrev_b32 v{T0}, 8, v{T0}")
    a(f"v_lshrrev_b32 v{T1}, 1, v{G}")
    a(f"v_lshl_add_u32 v{T1}, v{HF}, 1, v{T1}")
    a(f"v_lshl_add_u32 v{T1}, v{R4}, 2, v{T1}")
    a(f"s_lshl_b32 s34, s32, 3")
    a(f"v_add_u32 v{T1}, s34, v{T1}")
    a(f"v_and_b32 v{T1}, 15, v{T1}")
    a(f"v_lshl_add_u32 v{T1}, v{T1}, 4, v{T0}")
    a(f"v_and_b32 v{T2}, 1, v{G}")
    a(f"v_lshl_add_u32 v{T3}, v{T2}, 3, v{T1}")
    for i in range(4): a(f"v_add_u32 v{ARD[0][i]}, s{60+i}, v{T3}")
    a(f"v_lshl_add_u32 v{T1}, v{R4}, 2, v{G}")
    a(f"s_add_u32 s34, s34, 4")
    a(f"v_add_u32 v{T1}, s34, v{T1}")
    a(f"v_and_b32 v{T1}, 15, v{T1}")
    a(f"v_lshl_add_u32 v{T1}, v{T1}, 4, v{T0}")
    a(f"v_lshl_add_u32 v{T3}, v{HF}, 3, v{T1}")
    for i in range(4): a(f"v_add_u32 v{ARD[1][i]}, s{60+i}, v{T3}")
    a(f"v_lshlrev_b32 v{T1}, 2, v{C4}")
    a(f"v_add_u32 v{T1}, 15, v{T1}")
    a(f"v_and_b32 v{T1}, 15, v{T1}")
    a(f"v_lshlrev_b32 v{T1}, 4, v{T1}")
    a(f"v_lshl_add_u32 v{PADW}, v{LANE}, 8, v{T1}")
    SEL=56
    a(f"v_and_b32 v{T1}, 1, v{LANE}")
    a(f"v_cmp_eq_u32 vcc, v{T1}, v{MG}")
    a(f"v_mov_b32 v{T2}, 0x3f803f80")
    a(f"s_nop 1")
    for i in range(4):
        a(f"v_cndmask_b32 v{SEL+i}, 0, v{T2}, vcc")
    ACC0=64; ACC1=80; CSA=[96, 60]
    for i in range(32): a(f"v_mov_b32 v{ACC0+i}, 0")
    for i in range(4):
        a(f"v_mov_b32 v{CSA[0]+i}, 0"); a(f"v_mov_b32 v{CSA[1]+i}, 0")
    SQ0=110; SQ1=111
    a(f"v_mov_b32 v{SQ0}, 0"); a(f"v_mov_b32 v{SQ1}, 0")
    Z=36
    for i in range(4): a(f"v_mov_b32 v{Z+i}, 0")
    a(f"v_lshlrev_b32 v{T0}, 4, v0")
    a(f"v_add_u32 v{T0}, {L_PHI}, v{T0}")
    a(f"v_cmp_gt_u32 vcc, 384, v0")
    a(f"s_and_saveexec_b64 s[56:57], vcc")
    a(f"ds_write_b128 v{T0}, v[{Z}:{Z+3}]")
    a(f"s_mov_b64 exec, s[56:57]")
    a(f"v_mov_b32 v{T1}, {L_KEY}")
    a(f"ds_write_b32 v{T1}, v{Z}")
    a("s_waitcnt lgkmcnt(0)")
    a("s_barrier")
    a(f"v_mul_u32_u24 v{T0}, 328, v0")
    a(f"v_lshrrev_b32 v{T0}, 16, v{T0}")
    a(f"v_mul_u32_u24 v{T1}, 200, v{T0}")
    a(f"v_sub_u32 v{T1}, v0, v{T1}")
    a(f"v_mul_u32_u24 v{T2}, 6554, v{T1}")
    a(f"v_lshrrev_b32 v{T2}, 16, v{T2}")
    a(f"v_mul_u32_u24 v{T3}, 10, v{T2}")
    a(f"v_sub_u32 v{T1}, v{T1}, v{T3}")
    a(f"v_lshlrev_b32 v{T1}, 1, v{T1}")
    a(f"v_add_u32 v{T3}, 16, v{T2}")
    a(f"v_subrev_u32 v16, 4, v{T2}")
    a(f"v_cmp_gt_u32 vcc, 4, v{T2}")
    a(f"s_nop 1")
    a(f"v_cndmask_b32 v{T3}, v16, v{T3}, vcc")
    a(f"v_cmp_eq_u32 vcc, 1, v{T0}")
    a(f"s_nop 1")
    a(f"v_cndmask_b32 v{T2}, v{T2}, v{T3}, vcc")
    a(f"v_lshrrev_b32 v{T3}, 3, v{T2}")
    a(f"v_lshlrev_b32 v{T3}, 4, v{T3}")
    a(f"v_lshl_add_u32 v{T3}, v{T0}, 3, v{T3}")
    a(f"v_and_b32 v{T2}, 7, v{T2}")
    a(f"v_add_u32 v{T3}, v{T3}, v{T2}")
    a(f"v_lshrrev_b32 v{T2}, 4, v{T1}")
    a(f"v_lshlrev_b32 v{T2}, 5, v{T2}")
    a(f"v_bfe_u32 v16, v{T1}, 2, 2")
    a(f"v_lshl_add_u32 v{T2}, v16, 3, v{T2}")
    a(f"v_lshl_add_u32 v{T2}, v{T0}, 2, v{T2}")
    a(f"v_and_b32 v16, 3, v{T1}")
    a(f"v_add_u32 v{T2}, v{T2}, v16")
    a(f"v_lshlrev_b32 v{T3}, 7, v{T3}")
    a(f"v_lshl_add_u32 v{T3}, v{T2}, 1, v{T3}")
    a(f"v_add_u32 v{T3}, {L_PHI}, v{T3}")
    a(f"s_waitcnt vmcnt(12)")
    a(f"v_cmp_gt_u32 vcc, 400, v0")
    a(f"s_and_saveexec_b64 s[56:57], vcc")
    a(f"ds_write_b32 v{T3}, v{WPHI}")
    a(f"s_mov_b64 exec, s[56:57]")
    for kt in range(10):
        a(f"v_lshlrev_b32 v{WR+kt}, 16, v{WR+kt}")
        a(f"v_or_b32 v{WR+kt}, 0x3f80, v{WR+kt}")
    PADV=36
    def padw(kt):
        st = kt % 4
        a(f"s_cmp_lg_u32 s30, 0")
        a(f"s_cbranch_scc1 K1_NOPAD{kt}")
        a(f"v_mov_b32 v{PADV}, v{WR+kt}")
        a(f"v_mov_b32 v{PADV+2}, v{WR+kt}")
        a(f"ds_write_b128 v{PADW}, v[{PADV}:{PADV+3}] offset:{L_W + st*16384}")
        a.lab(f"K1_NOPAD{kt}")
    for kt in range(3): padw(kt)
    XF=[40,44]; AF=[[112,116],[120,124]]
    TA=48; TB=49; TC=50; TD=51
    def reads(kt, i, buf):
        st = kt % 4
        a(f"ds_read_b128 v[{XF[buf]}:{XF[buf]+3}], v{XRD[i]} offset:{st*16384}")
        for ti in range(2):
            for sec in range(2):
                b = AF[buf][ti] + 2*sec
                a(f"ds_read_b64_tr_b16 v[{b}:{b+1}], v{ARD[ti][i]} offset:{L_W + st*16384 + sec*1024}")
    st()
    a("s_waitcnt vmcnt(8) lgkmcnt(0)")
    a("s_barrier")
    st()
    reads(0, 0, 0)
    step = 0
    for kt in range(10):
        for i in range(4):
            buf = step & 1
            last = (kt == 9 and i == 3)
            if i == 3 and kt < 9:
                a(f"s_waitcnt vmcnt({4 if kt < 8 else 0}) lgkmcnt(0)")
                a("s_barrier")
                if kt + 3 < 10:
                    dma(kt + 3)
                    padw(kt + 3)
            if not last:
                nkt, ni = (kt, i + 1) if i < 3 else (kt + 1, 0)
                reads(nkt, ni, buf ^ 1)
                a("s_waitcnt lgkmcnt(5)")
            else:
                a("s_waitcnt lgkmcnt(0)")
            x = XF[buf]
            def sq(dws):
                for dw in dws:
                    a(f"v_lshlrev_b32 v{TA}, 16, v{x+dw}")
                    a(f"v_and_b32 v{TB}, 0xffff0000, v{x+dw}")
                    a(f"v_fmac_f32 v{SQ0}, v{TA}, v{TA}")
                    a(f"v_fmac_f32 v{SQ1}, v{TB}, v{TB}")
            a(f"v_mfma_f32_32x32x16_bf16 v[{ACC0}:{ACC0+15}], v[{AF[buf][0]}:{AF[buf][0]+3}], v[{x}:{x+3}], v[{ACC0}:{ACC0+15}]")
            if i in (0, 2): sq([0, 1])
            a(f"v_mfma_f32_32x32x16_bf16 v[{ACC1}:{ACC1+15}], v[{AF[buf][1]}:{AF[buf][1]+3}], v[{x}:{x+3}], v[{ACC1}:{ACC1+15}]")
            if i in (0, 2): sq([2, 3])
            if i == 1:
                for ti in range(2):
                    a(f"v_mfma_f32_16x16x32_bf16 v[{CSA[ti]}:{CSA[ti]+3}], v[{AF[buf][ti]}:{AF[buf][ti]+3}], v[{SEL}:{SEL+3}], v[{CSA[ti]}:{CSA[ti]+3}]")
            step += 1
    a("s_nop 15"); a("s_nop 7")
    st()
    a(f"v_add_f32 v{SQ0}, v{SQ0}, v{SQ1}")
    a(f"v_lshlrev_b32 v{T0}, 2, v0")
    a(f"v_add_u32 v{T0}, {L_SQ}, v{T0}")
    a(f"ds_write_b32 v{T0}, v{SQ0}")
    a(f"v_and_b32 v{T1}, 15, v{LANE}")
    a(f"v_lshrrev_b32 v{T2}, 4, v{LANE}")
    a(f"v_lshlrev_b32 v{T2}, 4, v{T2}")
    a(f"v_lshl_add_u32 v{T2}, v{T1}, 6, v{T2}")
    a(f"s_lshl_b32 s34, s31, 9")
    a(f"s_lshl_b32 s35, s32, 8")
    a(f"s_add_u32 s34, s34, s35")
    a(f"s_add_u32 s34, s34, {L_CSP}")
    a(f"v_add_u32 v{T2}, s34, v{T2}")
    a(f"v_cmp_gt_u32 vcc, 2, v{T1}")
    a(f"s_and_saveexec_b64 s[56:57], vcc")
    a(f"ds_write_b128 v{T2}, v[{CSA[0]}:{CSA[0]+3}]")
    a(f"ds_write_b128 v{T2}, v[{CSA[1]}:{CSA[1]+3}] offset:128")
    a(f"s_mov_b64 exec, s[56:57]")
    ROW=35
    a(f"s_lshl_b32 s34, s31, 5")
    a(f"v_add_u32 v{ROW}, s34, v{L31}")
    a(f"s_cmp_eq_u32 s32, 0")
    a(f"s_cbranch_scc1 K1_E0")
    a(f"v_lshlrev_b32 v{T1}, 2, v{ROW}")
    a(f"v_add_u32 v{T1}, {L_RS}, v{T1}")
    a(f"ds_write_b32 v{T1}, v{ACC1+12}")
    a(f"ds_write_b32 v{T1}, v{ACC1+13} offset:512")
    a.lab("K1_E0")
    a("s_waitcnt lgkmcnt(0)")
    a("s_barrier")
    a(f"v_lshlrev_b32 v{T1}, 2, v{ROW}")
    a(f"v_add_u32 v{T1}, {L_RS}, v{T1}")
    a(f"ds_read_b32 v{T2}, v{T1}")
    a(f"ds_read_b32 v{T3}, v{T1} offset:512")
    a(f"s_lshl_b32 s34, s31, 8")
    a(f"s_add_u32 s34, s34, {L_SQ}")
    a(f"v_lshlrev_b32 v{T0}, 2, v{L31}")
    a(f"v_add_u32 v{T0}, s34, v{T0}")
    a(f"ds_read_b32 v16, v{T0}")
    a(f"ds_read_b32 v17, v{T0} offset:128")
    a(f"ds_read_b32 v18, v{T0} offset:1024")
    a(f"ds_read_b32 v19, v{T0} offset:1152")
    CS=112
    a(f"v_lshlrev_b32 v{T0}, 4, v{KH}")
    a(f"s_lshl_b32 s35, s32, 8")
    a(f"s_add_u32 s35, s35, {L_CSP}")
    a(f"v_add_u32 v{T0}, s35, v{T0}")
    CT=144
    for part in range(4):
        dst = CS if part == 0 else CT
        for ti in range(2):
            for g in range(4):
                b = dst + 16*ti + 4*g
                a(f"ds_read_b128 v[{b}:{b+3}], v{T0} offset:{part*512 + ti*128 + g*32}")
        if part == 0:
            pass
        else:
            a("s_waitcnt lgkmcnt(0)")
            for i in range(32): a(f"v_add_f32 v{CS+i}, v{CS+i}, v{CT+i}")
    MB=52; RSTD=53; MR=54; RAWR=55
    a(f"v_add_f32 v16, v16, v17"); a(f"v_add_f32 v18, v18, v19"); a(f"v_add_f32 v16, v16, v18")
    a(f"s_mov_b32 s34, 0x3acccccd")
    a(f"v_mul_f32 v{MB}, s34, v{T2}")
    a(f"v_mul_f32 v16, s34, v16")
    a(f"v_fma_f32 v16, -v{MB}, v{MB}, v16")
    a(f"v_max_f32 v16, 0, v16")
    round_bf16(a, MB)
    round_bf16(a, 16)
    a(f"v_add_f32 v16, 0x3727c5ac, v16")
    round_bf16(a, 16)
    a(f"v_sqrt_f32 v16, v16")
    a("s_nop 0")
    round_bf16(a, 16)
    a(f"v_rcp_f32 v{RSTD}, v16")
    a("s_nop 0")
    a(f"v_mul_f32 v{MR}, v{MB}, v{RSTD}")
    a(f"v_mov_b32 v{RAWR}, v{T3}")
    st()
    for i in range(32):
        a(f"v_mul_f32 v{ACC0+i}, v{ACC0+i}, v{RSTD}")
        a(f"v_fma_f32 v{ACC0+i}, -v{MR}, v{CS+i}, v{ACC0+i}")
    BF=112
    for i in range(8): a(f"v_cvt_pk_bf16_f32 v{BF+i}, v{ACC0+2*i}, v{ACC0+2*i+1}")
    a(f"v_cvt_pk_bf16_f32 v{BF+8}, v{ACC1+0}, v{ACC1+1}")
    a(f"v_cvt_pk_bf16_f32 v{BF+9}, v{ACC1+2}, v{ACC1+3}")
    a(f"v_mov_b32 v{BF+10}, 0"); a(f"v_mov_b32 v{BF+11}, 0")
    VV=124
    for i in range(6): a(f"v_cvt_pk_bf16_f32 v{VV+i}, v{ACC1+4+2*i}, v{ACC1+5+2*i}")
    RVAL=130
    a(f"v_mov_b32 v{RVAL}, v{ACC1+13}")
    PA=132
    a(f"v_lshl_add_u32 v{T0}, v{KH}, 3, v{R4}")
    a(f"v_lshlrev_b32 v{T0}, 7, v{T0}")
    a(f"v_lshl_add_u32 v{T1}, v{MG}, 2, v{C4}")
    a(f"v_lshl_add_u32 v{T0}, v{T1}, 3, v{T0}")
    a(f"v_add_u32 v{T0}, {L_PHI}, v{T0}")
    for u in range(2):
        for t in range(3):
            for sec in range(2):
                b = PA + (u*3+t)*4 + 2*sec
                a(f"ds_read_b64_tr_b16 v[{b}:{b+1}], v{T0} offset:{t*2048 + sec*512 + u*64}")
    a("s_waitcnt lgkmcnt(0)")
    D0=64; D1=80
    for u, D in ((0, D0), (1, D1)):
        for t in range(3):
            b = PA + (u*3+t)*4
            c = "0" if t == 0 else f"v[{D}:{D+15}]"
            a(f"v_mfma_f32_32x32x16_bf16 v[{D}:{D+15}], v[{b}:{b+3}], v[{BF+4*t}:{BF+4*t+3}], {c}")
    a("s_nop 15"); a("s_nop 7")
    P = [D0+i for i in range(16)] + [D1+i for i in range(4)]
    E = [156+i for i in range(40)]
    OUT = [132+i for i in range(20)]
    softmax_pm(a, P, E, [16,17,18,19,T0,T1], OUT)
    st()
    a(f"v_mul_u32_u24 v{T0}, 192, v{ROW}")
    a(f"v_lshl_add_u32 v{T1}, v{KH}, 3, v{T0}")
    a(f"v_add_u32 v{T1}, {L_V}, v{T1}")
    a(f"v_lshl_add_u32 v{T2}, v{KH}, 5, v{T0}")
    a(f"v_add_u32 v{T2}, {L_V+32}, v{T2}")
    a(f"s_cmp_eq_u32 s32, 0")
    a(f"s_cbranch_scc0 K1_E5B")
    a(f"ds_write_b64 v{T1}, v[{VV}:{VV+1}]")
    a(f"ds_write_b64 v{T1}, v[{VV+2}:{VV+3}] offset:16")
    a(f"ds_write_b64 v{T2}, v[{VV+4}:{VV+5}]")
    a(f"s_lshl_b32 s34, s28, 2")
    a(f"s_add_u32 s34, s34, s31")
    a(f"s_lshl_b32 s34, s34, 4")
    a(f"s_add_u32 s34, s34, s29")
    a(f"s_mul_i32 s34, s34, 5120")
    a(f"v_mul_u32_u24 v{T3}, 2560, v{KH}")
    a(f"v_lshl_add_u32 v{T3}, v{L31}, 4, v{T3}")
    for j in range(5):
        a(f"buffer_store_dwordx4 v[{OUT[4*j]}:{OUT[4*j]+3}], v{T3}, s[24:27], s34 offen offset:{512*j}")
    a(f"s_branch K1_E5C")
    a.lab("K1_E5B")
    a(f"ds_write_b64 v{T1}, v[{VV}:{VV+1}] offset:72")
    a(f"ds_write_b64 v{T1}, v[{VV+2}:{VV+3}] offset:88")
    a(f"v_lshl_add_u32 v{T2}, v{KH}, 6, v{T0}")
    a(f"v_add_u32 v{T2}, {L_V+40}, v{T2}")
    a(f"v_mov_b32 v16, 0x3f80"); a(f"v_mov_b32 v17, 0")
    a(f"ds_write_b64 v{T2}, v[16:17]")
    a(f"v_mul_u32_u24 v{T3}, 80, v{KH}")
    a(f"v_add_u32 v{T3}, v{T3}, v{T0}")
    for j in range(5):
        a(f"ds_write_b128 v{T3}, v[{OUT[4*j]}:{OUT[4*j]+3}] offset:{L_PK + 16*j}")
    a(f"s_cmp_lg_u32 s29, 0")
    a(f"s_cbranch_scc1 K1_E5C")
    a(f"v_cmp_gt_u32 vcc, 32, v{LANE}")
    a(f"s_and_saveexec_b64 s[56:57], vcc")
    a(f"s_lshl_b32 s34, s28, 7")
    a(f"v_add_u32 v16, s34, v{ROW}")
    a(f"v_lshlrev_b32 v17, 3, v16")
    a(f"v_mov_b32 v18, v{MB}"); a(f"v_mov_b32 v19, v{RSTD}")
    a(f"buffer_store_dwordx2 v[18:19], v17, s[24:27], 0 offen offset:0" .replace("0 offen offset:0", f"s59 offen") )
    a.l.insert(len(a.l)-1, f"    s_mov_b32 s59, {WS_STATS}")
    a(f"v_cvt_pk_bf16_f32 v18, v{RVAL}, v{RVAL}")
    a(f"v_and_b32 v18, 0xffff, v18")
    a(f"v_and_b32 v19, 0x8000, v18")
    a(f"v_cmp_eq_u32 vcc, 0, v19")
    a(f"v_mov_b32 v19, 0xffff")
    a(f"v_mov_b32 v17, 0x8000")
    a(f"v_cndmask_b32 v19, v19, v17, vcc")
    a(f"v_xor_b32 v18, v18, v19")
    a(f"v_lshlrev_b32 v18, 16, v18")
    a(f"v_sub_u32 v16, 0xffff, v16")
    a(f"v_or_b32 v18, v18, v16")
    a(f"v_mov_b32 v19, {L_KEY}")
    a(f"ds_max_u32 v19, v18")
    a(f"s_mov_b64 exec, s[56:57]")
    a.lab("K1_E5C")
    a("s_waitcnt lgkmcnt(0)")
    a("s_barrier")
    st()
    a(f"s_cmp_lg_u32 s29, 0")
    a(f"s_cbranch_scc1 K1_E6")
    a(f"s_cmp_lg_u32 s30, 7")
    a(f"s_cbranch_scc1 K1_E6")
    a(f"v_mov_b32 v19, {L_KEY}")
    a(f"ds_read_b32 v18, v19")
    a(f"s_lshl_b32 s34, s28, 2")
    a(f"s_add_u32 s34, s34, {WS_KEYS}")
    a(f"v_mov_b32 v17, 0")
    a("s_waitcnt lgkmcnt(0)")
    a(f"v_cmp_eq_u32 vcc, 0, v{LANE}")
    a(f"s_and_saveexec_b64 s[56:57], vcc")
    a(f"buffer_store_dword v18, v17, s[24:27], s34 offen")
    a(f"s_mov_b64 exec, s[56:57]")
    a.lab("K1_E6")
    a(f"s_cmp_ge_u32 s30, 4")
    a(f"s_cbranch_scc1 K1_END2")
    a(f"s_and_b32 s60, s30, 1")
    a(f"s_lshr_b32 s61, s30, 1")
    a(f"v_lshl_add_u32 v{T0}, v{KH}, 3, v{R4}")
    a(f"v_mul_u32_u24 v{T0}, 192, v{T0}")
    a(f"v_lshl_add_u32 v{T1}, v{MG}, 2, v{C4}")
    a(f"v_lshl_add_u32 v{T0}, v{T1}, 3, v{T0}")
    a(f"s_lshl_b32 s34, s60, 6")
    a(f"s_add_u32 s34, s34, {L_V}")
    a(f"v_add_u32 v{T2}, s34, v{T0}")
    a(f"s_mul_i32 s34, s60, 80")
    a(f"s_lshl_b32 s35, s61, 6")
    a(f"s_add_u32 s34, s34, s35")
    a(f"s_add_u32 s34, s34, {L_PK}")
    a(f"v_add_u32 v{T3}, s34, v{T0}")
    KA=112; KB=144
    for ks in range(8):
        for sec in range(2):
            a(f"ds_read_b64_tr_b16 v[{KA+4*ks+2*sec}:{KA+4*ks+2*sec+1}], v{T2} offset:{ks*3072+sec*768}")
            a(f"ds_read_b64_tr_b16 v[{KB+4*ks+2*sec}:{KB+4*ks+2*sec+1}], v{T3} offset:{ks*3072+sec*768}")
    for ks in range(8):
        a(f"s_waitcnt lgkmcnt({min(15, 4*(7-ks))})")
        c = "0" if ks == 0 else f"v[{D0}:{D0+15}]"
        a(f"v_mfma_f32_32x32x16_bf16 v[{D0}:{D0+15}], v[{KA+4*ks}:{KA+4*ks+3}], v[{KB+4*ks}:{KB+4*ks+3}], {c}")
    a("s_nop 15"); a("s_nop 7")
    a(f"s_lshl_b32 s34, s28, 5")
    a(f"s_lshl_b32 s35, s29, 1")
    a(f"s_add_u32 s34, s34, s35")
    a(f"s_add_u32 s34, s34, s60")
    a(f"s_lshl_b32 s34, s34, 1")
    a(f"s_add_u32 s34, s34, s61")
    a(f"s_mul_i32 s34, s34, 3072")
    a(f"s_add_u32 s34, s34, {WS_KVP}")
    a(f"v_lshlrev_b32 v{T0}, 2, v{LANE}")
    for r in range(12):
        a(f"buffer_store_dword v{D0+r}, v{T0}, s[24:27], s34 offen offset:{256*r}")
    a.lab("K1_END2")
    st(); st.flush(0, 30)
    a.lab("K1_END")
    a("s_endpgm")
    return a.text()


K2_LDS = 32768
def unsort_key(a, skey, sidx, srbits):
    a(f"s_and_b32 s{sidx}, s{skey}, 0xffff")
    a(f"s_sub_u32 s{sidx}, 0xffff, s{sidx}")
    a(f"s_lshr_b32 s{srbits}, s{skey}, 16")
    a(f"s_and_b32 s90, s{srbits}, 0x8000")
    a(f"s_cmp_eq_u32 s90, 0")
    a(f"s_mov_b32 s91, 0x8000")
    a(f"s_cselect_b32 s90, 0xffff, s91")
    a(f"s_xor_b32 s{srbits}, s{srbits}, s90")
    a(f"s_lshl_b32 s{srbits}, s{srbits}, 16")

def load_keys_max(a, wsbase, dst):
    a(f"s_add_u32 s80, s{wsbase}, {WS_KEYS}")
    a(f"s_addc_u32 s81, s{wsbase+1}, 0")
    a(f"s_load_dwordx16 s[64:79], s[80:81], 0")
    a("s_waitcnt lgkmcnt(0)")
    a(f"s_max_u32 s{dst}, s64, s65")
    for i in range(66, 80): a(f"s_max_u32 s{dst}, s{dst}, s{i}")

def gen_k2():
    a = A()
    a.lab("k2_kernel")
    a("s_cmp_ge_u32 s2, 272")
    a("s_cbranch_scc1 K2_END")
    a("s_load_dwordx2 s[4:5], s[0:1], 0")
    a("s_load_dwordx2 s[6:7], s[0:1], 24")
    a("s_load_dwordx4 s[8:11], s[0:1], 48")
    a("s_load_dwordx2 s[12:13], s[0:1], 64")
    a("s_load_dwordx2 s[14:15], s[0:1], 88")
    a("v_lshrrev_b32 v1, 6, v0")
    a("v_and_b32 v2, 63, v0")
    a("s_nop 0")
    a("v_readfirstlane_b32 s30, v1")
    a("s_waitcnt lgkmcnt(0)")
    srd(a, 24, 14, WS_BYTES)
    a("s_mov_b32 s92, s30")
    st = Stamper(a); st()
    a("s_cmp_ge_u32 s2, 224")
    a("s_cbranch_scc1 K2_MOE")
    a("s_cmp_ge_u32 s2, 24")
    a("s_cbranch_scc1 K2_WO")
    a("s_lshl_b32 s31, s2, 2")
    a("s_add_u32 s31, s31, s30")
    a("s_mul_i32 s32, s31, 43")
    a("s_lshr_b32 s32, s32, 8")
    a("s_mul_i32 s33, s32, 6")
    a("s_sub_u32 s33, s31, s33")
    a("s_cmp_ge_u32 s33, 3")
    a("s_cselect_b32 s34, 1, 0")
    a("s_sub_u32 s35, s33, s34")
    a("s_lshl_b32 s36, s32, 1")
    a("s_add_u32 s36, s36, s34")
    a("v_and_b32 v3, 31, v2")
    a("v_lshrrev_b32 v4, 5, v2")
    a("s_lshl_b32 s37, s35, 1")
    a("v_add_u32 v5, s37, v4")
    a("v_cmp_le_u32 vcc, 5, v5")
    a("v_mov_b32 v6, 0")
    a("s_nop 0")
    a("v_cndmask_b32 v6, v6, 1, vcc")
    a("v_mul_u32_u24 v7, 5, v6")
    a("v_sub_u32 v5, v5, v7")
    a("v_lshlrev_b32 v5, 3, v5")
    a("v_bfe_u32 v7, v3, 2, 1")
    a("v_lshrrev_b32 v8, 3, v3")
    a("v_and_b32 v9, 3, v3")
    a("v_lshl_add_u32 v8, v8, 2, v9")
    a("v_mul_u32_u24 v9, 10, v7")
    a("v_add_u32 v9, v9, v8")
    a("v_cmp_gt_u32 vcc, 10, v8")
    a("v_mov_b32 v10, 20")
    a("s_nop 0")
    a("v_cndmask_b32 v9, v10, v9, vcc")
    a("v_lshrrev_b32 v10, 5, v5")
    a("v_mul_u32_u24 v10, 3072, v10")
    a("v_lshrrev_b32 v11, 3, v9")
    a("v_and_b32 v12, 3, v9")
    a("v_lshl_add_u32 v11, v11, 2, v12")
    a("v_lshl_add_u32 v10, v11, 8, v10")
    a("v_and_b32 v11, 31, v5")
    a("v_bfe_u32 v12, v9, 2, 1")
    a("v_lshl_add_u32 v11, v12, 5, v11")
    a("v_lshl_add_u32 v10, v11, 2, v10")
    a("s_mul_i32 s37, s36, 6144")
    a("v_add_u32 v10, s37, v10")
    a("v_cmp_ne_u32 vcc, s34, v6")
    a("v_cmp_lt_u32 s[40:41], 10, v8")
    a("s_or_b64 vcc, vcc, s[40:41]")
    a("v_mov_b32 v11, 0x7f000000")
    a("s_nop 0")
    a("v_cndmask_b32 v10, v10, v11, vcc")
    for rb in range(16):
        a(f"s_mov_b32 s37, {WS_KVP + rb*196608}")
        a(f"buffer_load_dwordx4 v[{16+8*rb}:{19+8*rb}], v10, s[24:27], s37 offen")
        a(f"buffer_load_dwordx4 v[{20+8*rb}:{23+8*rb}], v10, s[24:27], s37 offen offset:16")
    for rb in range(1, 16):
        a(f"s_waitcnt vmcnt({2*(15-rb)})")
        for i in range(8): a(f"v_add_f32 v{16+i}, v{16+i}, v{16+8*rb+i}")
    for i in range(4): a(f"v_cvt_pk_bf16_f32 v{12+i}, v{16+2*i}, v{17+2*i}")
    a("v_lshlrev_b32 v10, 4, v2")
    a("s_lshl_b32 s37, s31, 10")
    a(f"s_add_u32 s37, s37, {WS_KVF}")
    a("buffer_store_dwordx4 v[12:15], v10, s[24:27], s37 offen")
    a("s_branch K2_END2")
    a.lab("K2_WO")
    srd(a, 44, 6, 819200)
    a("s_sub_u32 s31, s2, 24")
    a("s_lshl_b32 s31, s31, 2")
    a("s_add_u32 s31, s31, s30")
    a("s_mul_i32 s32, s31, 41")
    a("s_lshr_b32 s32, s32, 13")
    a("s_mul_i32 s33, s32, 200")
    a("s_sub_u32 s33, s31, s33")
    a("s_mul_i32 s34, s33, 205")
    a("s_lshr_b32 s34, s34, 11")
    a("s_mul_i32 s35, s34, 10")
    a("s_sub_u32 s35, s33, s35")
    a("v_and_b32 v3, 31, v2")
    a("v_lshrrev_b32 v4, 5, v2")
    a("v_mul_u32_u24 v4, 12800, v4")
    a("s_lshl_b32 s36, s34, 6")
    a("v_lshl_add_u32 v3, v3, 1, v4")
    a("v_add_u32 v3, s36, v3")
    for j in range(8):
        a(f"s_lshl_b32 s37, s35, 3")
        a(f"s_add_u32 s37, s37, {j}")
        a(f"s_mul_i32 s38, s37, 205")
        a(f"s_lshr_b32 s38, s38, 11")
        a(f"s_mul_i32 s39, s38, 10")
        a(f"s_sub_u32 s39, s37, s39")
        a(f"s_lshl_b32 s40, s32, 3")
        a(f"s_add_u32 s40, s40, s38")
        a(f"s_mul_i32 s40, s40, 20")
        a(f"s_add_u32 s40, s40, s39")
        a(f"s_mul_i32 s40, s40, 1280")
        a(f"buffer_load_ushort v{20+j}, v3, s[44:47], s40 offen")
    a("v_lshlrev_b32 v16, 4, v2")
    a("s_lshl_b32 s37, s31, 10")
    a(f"s_add_u32 s37, s37, {WS_WOF}")
    a("s_waitcnt vmcnt(0)")
    for i in range(4): a(f"v_lshl_or_b32 v{8+i}, v{21+2*i}, 16, v{20+2*i}")
    a("buffer_store_dwordx4 v[8:11], v16, s[24:27], s37 offen")
    a("s_branch K2_END2")
    a.lab("K2_MOE")
    a("s_sub_u32 s93, s2, 224")
    a("s_mov_b32 s92, s30")
    srd(a, 28, 8, 1966080)
    srd(a, 32, 10, 1966080)
    srd(a, 36, 12, 1966080)
    srd(a, 40, 4, 2621440)
    a("v_lshrrev_b32 v3, 2, v0")
    a("v_and_b32 v4, 3, v0")
    a("v_mul_u32_u24 v5, 3072, v3")
    a("v_lshl_add_u32 v5, v4, 4, v5")
    a("s_lshl_b32 s44, s93, 6")
    a("v_add_u32 v5, s44, v5")
    GW=32; UW=72; DW=112
    for i in range(10):
        a(f"s_mov_b32 s45, {i*196608}")
        a(f"buffer_load_dwordx4 v[{GW+4*i}:{GW+4*i+3}], v5, s[28:31], s45 offen")
        a(f"buffer_load_dwordx4 v[{UW+4*i}:{UW+4*i+3}], v5, s[32:35], s45 offen")
    a("v_mul_u32_u24 v6, 205, v0")
    a("v_lshrrev_b32 v6, 14, v6")
    a("v_mul_u32_u24 v7, 80, v6")
    a("v_sub_u32 v7, v0, v7")
    a("s_lshl_b32 s44, s93, 5")
    a("v_add_u32 v8, s44, v6")
    a("v_mul_u32_u24 v8, 1280, v8")
    a("v_lshl_add_u32 v8, v7, 4, v8")
    a("v_cmp_gt_u32 vcc, 3, v6")
    a("v_mov_b32 v9, 0x7f000000")
    a("s_nop 0")
    a("v_cndmask_b32 v8, v9, v8, vcc")
    a("v_cmp_gt_u32 vcc, 2, v6")
    a("s_nop 1")
    a("v_cndmask_b32 v10, v9, v8, vcc")
    for i in range(11):
        a(f"s_mov_b32 s45, {i*3*1280}")
        a(f"buffer_load_dwordx4 v[{DW+4*i}:{DW+4*i+3}], v{8 if i < 10 else 10}, s[36:39], s45 offen")
    load_keys_max(a, 14, 46)
    unsort_key(a, 46, 47, 48)
    a(f"s_lshl_b32 s49, s47, 3")
    a(f"s_add_u32 s49, s49, {WS_STATS}")
    a(f"s_add_u32 s80, s14, s49")
    a(f"s_addc_u32 s81, s15, 0")
    a(f"s_load_dwordx2 s[50:51], s[80:81], 0")
    a(f"s_mul_i32 s52, s47, 1280")
    a("v_lshlrev_b32 v11, 4, v0")
    a("v_cmp_gt_u32 vcc, 80, v0")
    a("s_and_saveexec_b64 s[56:57], vcc")
    a("buffer_load_dwordx4 v[12:15], v11, s[40:43], s52 offen")
    a("s_waitcnt vmcnt(0) lgkmcnt(0)")
    for i in range(4):
        a(f"v_lshlrev_b32 v{16+2*i}, 16, v{12+i}")
        a(f"v_and_b32 v{17+2*i}, 0xffff0000, v{12+i}")
    for i in range(8):
        a(f"v_subrev_f32 v{16+i}, s50, v{16+i}")
        round_bf16(a, 16+i)
        a(f"v_mul_f32 v{16+i}, s51, v{16+i}")
        round_bf16(a, 16+i)
    a("v_lshlrev_b32 v11, 5, v0")
    a("ds_write_b128 v11, v[16:19]")
    a("ds_write_b128 v11, v[20:23] offset:16")
    a("s_mov_b64 exec, s[56:57]")
    a("s_waitcnt vmcnt(0) lgkmcnt(0)")
    a("s_barrier")
    st()
    a("v_lshlrev_b32 v11, 2, v3")
    for i in range(10): a(f"ds_read_b32 v{12+i}, v11 offset:{256*i}")
    AG=160; AU=168
    for i in range(16): a(f"v_mov_b32 v{AG+i}, 0")
    a("s_waitcnt lgkmcnt(0)")
    for i in range(10):
        for (W, ACC) in ((GW, AG), (UW, AU)):
            for d in range(4):
                a(f"v_lshlrev_b32 v22, 16, v{W+4*i+d}")
                a(f"v_and_b32 v23, 0xffff0000, v{W+4*i+d}")
                a(f"v_fmac_f32 v{ACC+2*d}, v22, v{12+i}")
                a(f"v_fmac_f32 v{ACC+2*d+1}, v23, v{12+i}")
    RED=4096
    a("v_lshlrev_b32 v11, 2, v0")
    for v in range(16): a(f"ds_write_b32 v11, v{AG+v} offset:{RED + v*1040}")
    a("s_waitcnt lgkmcnt(0)")
    a("s_barrier")
    a("v_lshrrev_b32 v12, 5, v2")
    a("v_and_b32 v13, 7, v2")
    a("v_lshl_add_u32 v12, v12, 3, v13")
    a("v_mul_u32_u24 v12, 1040, v12")
    a("v_bfe_u32 v13, v2, 3, 2")
    a("v_lshl_add_u32 v12, v13, 2, v12")
    a("s_lshl_b32 s44, s92, 8")
    a("v_add_u32 v12, s44, v12")
    for i in range(16): a(f"ds_read_b32 v{16+i}, v12 offset:{RED + 16*i}")
    a("s_waitcnt lgkmcnt(0)")
    for i in range(1, 16): a(f"v_add_f32 v16, v16, v{16+i}")
    RED2=24576
    a("v_lshlrev_b32 v11, 2, v0")
    a(f"ds_write_b32 v11, v16 offset:{RED2}")
    a("s_waitcnt lgkmcnt(0)")
    a("s_barrier")
    HB=26624
    a("v_cmp_gt_u32 vcc, 32, v0")
    a("s_and_saveexec_b64 s[56:57], vcc")
    for q in range(4):
        a(f"ds_read_b32 v{16+q}, v11 offset:{RED2 + 256*q}")
        a(f"ds_read_b32 v{20+q}, v11 offset:{RED2 + 256*q + 128}")
    a("s_waitcnt lgkmcnt(0)")
    a("v_add_f32 v16, v16, v17"); a("v_add_f32 v18, v18, v19"); a("v_add_f32 v16, v16, v18")
    a("v_add_f32 v20, v20, v21"); a("v_add_f32 v22, v22, v23"); a("v_add_f32 v20, v20, v22")
    round_bf16(a, 16); round_bf16(a, 20)
    a(f"s_mov_b32 s60, 0x{LOG2E:x}")
    a("v_mul_f32 v17, s60, v16")
    a("v_exp_f32 v17, -v17")
    a("s_nop 0")
    a("v_add_f32 v17, 1.0, v17")
    a("v_rcp_f32 v17, v17")
    a("s_nop 0")
    a("v_mul_f32 v16, v16, v17")
    round_bf16(a, 16)
    a("v_mul_f32 v16, v16, v20")
    round_bf16(a, 16)
    a(f"ds_write_b32 v11, v16 offset:{HB}")
    a("s_mov_b64 exec, s[56:57]")
    a("s_waitcnt lgkmcnt(0)")
    a("s_barrier")
    st()
    a("v_lshlrev_b32 v11, 2, v6")
    for i in range(11): a(f"ds_read_b32 v{12+i}, v11 offset:{HB + 12*i}")
    for i in range(8): a(f"v_mov_b32 v{AG+i}, 0")
    a("s_waitcnt lgkmcnt(0)")
    a("v_cmp_gt_u32 vcc, 2, v6")
    a("s_nop 1")
    a("v_cndmask_b32 v22, 0, v22, vcc")
    a("v_cmp_gt_u32 vcc, 3, v6")
    a("s_nop 1")
    for i in range(10): a(f"v_cndmask_b32 v{12+i}, 0, v{12+i}, vcc")
    for i in range(11):
        for d in range(4):
            a(f"v_lshlrev_b32 v24, 16, v{DW+4*i+d}")
            a(f"v_and_b32 v25, 0xffff0000, v{DW+4*i+d}")
            a(f"v_fmac_f32 v{AG+2*d}, v24, v{12+i}")
            a(f"v_fmac_f32 v{AG+2*d+1}, v25, v{12+i}")
    RED3=4096
    a("v_lshlrev_b32 v11, 5, v0")
    a(f"ds_write_b128 v11, v[{AG}:{AG+3}] offset:{RED3}")
    a(f"ds_write_b128 v11, v[{AG+4}:{AG+7}] offset:{RED3+16}")
    a("s_waitcnt lgkmcnt(0)")
    a("s_barrier")
    a("v_cmp_gt_u32 vcc, 160, v0")
    a("s_and_saveexec_b64 s[56:57], vcc")
    a("v_lshlrev_b32 v11, 4, v0")
    for q in range(3): a(f"ds_read_b128 v[{16+4*q}:{19+4*q}], v11 offset:{RED3 + 2560*q}")
    a("s_waitcnt lgkmcnt(0)")
    for i in range(4):
        a(f"v_add_f32 v{16+i}, v{16+i}, v{20+i}")
        a(f"v_add_f32 v{16+i}, v{16+i}, v{24+i}")
    a("s_mul_i32 s44, s93, 2560")
    a(f"s_add_u32 s44, s44, {WS_YP}")
    a("buffer_store_dwordx4 v[16:19], v11, s[24:27], s44 offen")
    a("s_mov_b64 exec, -1")
    a.lab("K2_END2")
    a("s_waitcnt vmcnt(0)")
    st(); st.flush(1, 92)
    a.lab("K2_END")
    a("s_endpgm")
    return a.text()


K3_Y2 = 0
K3_PB = 1024
K3_LDS = 4*32*656 + 1024
def gen_k3():
    a = A()
    a.lab("k3_kernel")
    a("s_cmp_ge_u32 s2, 256")
    a("s_cbranch_scc1 K3_END")
    a("s_load_dwordx2 s[4:5], s[0:1], 0")
    a("s_load_dwordx2 s[6:7], s[0:1], 72")
    a("s_load_dwordx2 s[14:15], s[0:1], 88")
    a("v_lshrrev_b32 v1, 6, v0")
    a("v_and_b32 v2, 63, v0")
    a("s_nop 0")
    a("v_readfirstlane_b32 s30, v1")
    a("s_and_b32 s31, s2, 7")
    a("s_lshr_b32 s32, s2, 3")
    a("s_and_b32 s33, s32, 3")
    a("s_lshr_b32 s32, s32, 2")
    a("s_lshl_b32 s31, s31, 3")
    a("s_add_u32 s34, s31, s32")
    a("s_waitcnt lgkmcnt(0)")
    srd(a, 24, 14, WS_BYTES)
    srd(a, 16, 4, 2621440)
    srd(a, 20, 6, 2621440)
    a("v_lshlrev_b32 v3, 4, v2")
    st = Stamper(a); st()
    ES=[8,9,10,11,12]; EU=[13,14,15,16,17]; EO=[18,19,20,21,22]
    XV=24; SV=34
    a("s_lshl_b32 s35, s34, 5")
    a("s_mul_i32 s36, s33, 320")
    a(f"s_mov_b32 s37, {WS_STATS}")
    for q in range(5):
        a(f"v_add_u32 v4, {256*q}, v0")
        a(f"v_mul_u32_u24 v{ES[q]}, 1639, v4")
        a(f"v_lshrrev_b32 v{ES[q]}, 16, v{ES[q]}")
        a(f"v_mul_u32_u24 v5, 40, v{ES[q]}")
        a(f"v_sub_u32 v{EU[q]}, v4, v5")
        a(f"v_add_u32 v{ES[q]}, s35, v{ES[q]}")
        a(f"v_mul_u32_u24 v6, 1280, v{ES[q]}")
        a(f"v_lshl_add_u32 v6, v{EU[q]}, 3, v6")
        a(f"v_add_u32 v{EO[q]}, s36, v6")
        a(f"buffer_load_dwordx2 v[{XV+2*q}:{XV+2*q+1}], v{EO[q]}, s[16:19], 0 offen")
        a(f"v_lshlrev_b32 v5, 3, v{ES[q]}")
        a(f"buffer_load_dwordx2 v[{SV+2*q}:{SV+2*q+1}], v5, s[24:27], s37 offen")
    a("s_lshl_b32 s37, s34, 4")
    a("s_lshl_b32 s38, s30, 2")
    a("s_add_u32 s37, s37, s38")
    a("s_mul_i32 s37, s37, 5120")
    a("s_mul_i32 s38, s30, 24576")
    a(f"s_add_u32 s38, s38, {WS_KVF}")
    a("s_mul_i32 s39, s30, 200")
    a("s_mul_i32 s40, s33, 50")
    a("s_add_u32 s39, s39, s40")
    a("s_lshl_b32 s39, s39, 10")
    a(f"s_add_u32 s39, s39, {WS_WOF}")
    def ld(base, sbase, off):
        hi, lo = off // 4096 * 4096, off % 4096
        a(f"s_add_u32 s41, s{sbase}, {hi}")
        a(f"buffer_load_dwordx4 a[{base}:{base+3}], v3, s[24:27], s41 offen offset:{lo}")
    for pl in range(4):
        for t in range(5): ld(20*pl+4*t, 37, (pl*5+t)*1024)
        for fi in range(6): ld(80+24*pl+4*fi, 38, (pl*6+fi)*1024)
    def woreg(wi):
        if wi < 20: return 176+4*wi
        j = wi - 20; pl, r = j // 11, j % 11
        return 20*pl + 4*r if r < 5 else 80 + 24*pl + 4*(r-5)
    def ldw(wi):
        t2, k = wi // 5, wi % 5
        ld(woreg(wi), 39, (k*10+t2)*1024)
    for wi in range(9): ldw(wi)
    load_keys_max(a, 14, 46)
    unsort_key(a, 46, 47, 48)
    D=[[44, 60], [76, 92]]
    OF=108; ACC=148; TT=228
    def p1_mfma(pl):
        Da, Db = D[pl & 1]
        for (Dx, f0, t0) in ((Da, 0, 0), (Db, 3, 2)):
            for i in range(3):
                A_ = 80+24*pl+4*(f0+i); B_ = 20*pl+4*(t0+i)
                c = "0" if i == 0 else f"v[{Dx}:{Dx+15}]"
                a(f"v_mfma_f32_32x32x16_bf16 v[{Dx}:{Dx+15}], a[{A_}:{A_+3}], a[{B_}:{B_+3}], {c}")
    def p1_valu(pl):
        for hh, Dx in enumerate(D[pl & 1]):
            hl = 2*pl + hh
            a(f"v_add_f32 v{TT}, 0x358637bd, v{Dx+10}")
            a(f"v_rcp_f32 v{TT}, v{TT}")
            a("s_nop 0")
            for i in range(10): a(f"v_mul_f32 v{Dx+i}, v{Dx+i}, v{TT}")
            for i in range(5): a(f"v_cvt_pk_bf16_f32 v{OF+5*hl+i}, v{Dx+2*i}, v{Dx+2*i+1}")
    st()
    a("s_waitcnt vmcnt(42)")
    st()
    p1_mfma(0)
    for wi in range(9, 20): ldw(wi)
    a("s_waitcnt vmcnt(42)")
    p1_mfma(1)
    for wi in range(20, 31): ldw(wi)
    p1_valu(0)
    a("s_waitcnt vmcnt(42)")
    p1_mfma(2)
    for wi in range(31, 42): ldw(wi)
    p1_valu(1)
    a("s_waitcnt vmcnt(42)")
    p1_mfma(3)
    for wi in range(42, 50): ldw(wi)
    p1_valu(2)
    a("s_nop 7")
    p1_valu(3)
    a("s_nop 1")
    st()
    for t2 in range(10):
        a(f"s_waitcnt vmcnt({45-5*t2})")
        for k in range(5):
            A_ = woreg(5*t2+k)
            c = "0" if t2 == 0 else f"v[{ACC+16*k}:{ACC+16*k+15}]"
            a(f"v_mfma_f32_32x32x16_bf16 v[{ACC+16*k}:{ACC+16*k+15}], a[{A_}:{A_+3}], v[{OF+4*t2}:{OF+4*t2+3}], {c}")
    st()
    a("s_lshr_b32 s49, s47, 5")
    a("s_cmp_lg_u32 s49, s34")
    a("s_cbranch_scc1 K3_NOY")
    a("v_cmp_gt_u32 vcc, 160, v0")
    a("s_and_saveexec_b64 s[56:57], vcc")
    a("v_lshlrev_b32 v4, 2, v0")
    a("s_mul_i32 s50, s33, 640")
    a(f"s_add_u32 s50, s50, {WS_YP}")
    for j in range(48):
        a(f"s_add_u32 s51, s50, {j*2560}")
        a(f"buffer_load_dword v{44+j}, v4, s[24:27], s51 offen")
    a("s_waitcnt vmcnt(0)")
    for j in range(1, 48): a(f"v_add_f32 v44, v44, v{44+j}")
    round_bf16(a, 44)
    a(f"s_mov_b32 s60, 0x{LOG2E:x}")
    a("v_mov_b32 v45, s48")
    a("v_mul_f32 v45, s60, v45")
    a("v_exp_f32 v45, -v45")
    a("s_nop 0")
    a("v_add_f32 v45, 1.0, v45")
    a("v_rcp_f32 v45, v45")
    a("s_nop 0")
    round_bf16(a, 45)
    a("v_mul_f32 v44, v44, v45")
    round_bf16(a, 44)
    a(f"ds_write_b32 v4, v44 offset:{K3_Y2}")
    a("s_mov_b64 exec, s[56:57]")
    a.lab("K3_NOY")
    a("s_nop 15"); a("s_nop 7")
    a("v_and_b32 v4, 31, v2")
    a("v_mul_u32_u24 v4, 656, v4")
    a("v_lshrrev_b32 v5, 5, v2")
    a("v_lshl_add_u32 v4, v5, 4, v4")
    a("s_mul_i32 s50, s30, 20992")
    a(f"s_add_u32 s50, s50, {K3_PB}")
    a("v_add_u32 v4, s50, v4")
    for k in range(5):
        for g in range(4):
            a(f"ds_write_b128 v4, v[{ACC+16*k+4*g}:{ACC+16*k+4*g+3}] offset:{(8*k+2*g)*16}")
    a("s_waitcnt vmcnt(0) lgkmcnt(0)")
    a("s_barrier")
    st()
    for q in range(5):
        a(f"v_subrev_u32 v4, s35, v{ES[q]}")
        a(f"v_mul_u32_u24 v4, 656, v4")
        a(f"v_lshl_add_u32 v4, v{EU[q]}, 4, v4")
        for w in range(4):
            a(f"ds_read_b128 v[{44+4*w}:{47+4*w}], v4 offset:{K3_PB + w*20992}")
        a(f"v_lshlrev_b32 v5, 4, v{EU[q]}")
        a(f"ds_read_b128 v[60:63], v5 offset:{K3_Y2}")
        a("s_waitcnt lgkmcnt(0)")
        for i in range(4):
            a(f"v_add_f32 v{44+i}, v{44+i}, v{48+i}")
            a(f"v_add_f32 v{52+i}, v{52+i}, v{56+i}")
            a(f"v_add_f32 v{44+i}, v{44+i}, v{52+i}")
        a(f"v_lshlrev_b32 v64, 16, v{XV+2*q}")
        a(f"v_and_b32 v65, 0xffff0000, v{XV+2*q}")
        a(f"v_lshlrev_b32 v66, 16, v{XV+2*q+1}")
        a(f"v_and_b32 v67, 0xffff0000, v{XV+2*q+1}")
        a(f"v_cmp_eq_u32 vcc, s47, v{ES[q]}")
        for i in range(4):
            round_bf16(a, 44+i)
            a(f"v_add_f32 v{44+i}, v{64+i}, v{44+i}")
            round_bf16(a, 44+i)
            a(f"v_sub_f32 v{64+i}, v{64+i}, v{SV+2*q}")
            round_bf16(a, 64+i)
            a(f"v_mul_f32 v{64+i}, v{64+i}, v{SV+2*q+1}")
            round_bf16(a, 64+i)
            a(f"v_cndmask_b32 v{60+i}, 0, v{60+i}, vcc")
            a(f"v_add_f32 v{64+i}, v{64+i}, v{60+i}")
            round_bf16(a, 64+i)
            a(f"v_add_f32 v{44+i}, v{44+i}, v{64+i}")
        a(f"v_cvt_pk_bf16_f32 v{68+2*q}, v44, v45")
        a(f"v_cvt_pk_bf16_f32 v{69+2*q}, v46, v47")
        a(f"buffer_store_dwordx2 v[{68+2*q}:{69+2*q}], v{EO[q]}, s[20:23], 0 offen")
    a("s_waitcnt vmcnt(0)")
    st(); st.flush(2, 30)
    a.lab("K3_END")
    a("s_endpgm")
    return a.text()

def header(launches):
    h = []
    for (k, g, b, lds) in launches:
        h.append(f"; @launch kernel={k} grid=({g},1,1) block=({b},1,1) lds={lds}")
    return "\n".join(h) + "\n"

def build(kernels):
    s = "; generated by work/gen.py\n"
    s += header([(k[0], k[3], k[4], k[5]) for k in kernels])
    s += '.amdgcn_target "amdgcn-amd-amdhsa--gfx950"\n.text\n'
    for k in kernels:
        s += f".globl {k[0]}\n.p2align 8\n.type {k[0]},@function\n" + k[1]
    s += '.section .rodata,"a"\n'
    for k in kernels:
        s += ".p2align 6\n" + kdesc(k[0], k[2], accum=k[6])
    return s

if __name__ == "__main__":
    if "--stamps" in sys.argv:
        STAMPS = True; sys.argv.remove("--stamps")
    ks = [("k1_kernel", gen_k1(), 256 if STAMPS else 200, 256, 512, K1_LDS, None),
          ("k2_kernel", gen_k2(), 256 if STAMPS else 180, 272, 256, K2_LDS, None),
          ("k3_kernel", gen_k3(), 512, 256, 256, K3_LDS, 256)]
    out = sys.argv[1] if len(sys.argv) > 1 else "all.s"
    open(out, "w").write(build(ks))
```

```python
import sys
from gen import A, kdesc, srd, round_bf16, LOG2E, softmax_pm, unsort_key, header
import gen

WS_PHIQ  = 0x000000
WS_KVP   = 0x500000
WS_STATS = 0x800000
WS_KEYS  = 0x804000
WS_FKEY  = 0x805000
WS_KVF   = 0x810000
WS_WOF   = 0x830000
WS_YP    = 0x900000
WS_GU    = 0x940000
WS_XF    = 0xA00000
WS_WF    = 0xD00000
WS_DBG   = 0x1000000
WS_BYTES = 0x1400000
OOB = 0x7f000000
STAMPS = False

class Stamper:
    def __init__(self, a): self.a = a; self.n = 0
    def __call__(self):
        if not STAMPS: return
        a = self.a
        a(f"s_memrealtime s[82:83]")
        a("s_waitcnt lgkmcnt(0)")
        a(f"s_mov_b32 s{84+self.n}, s82")
        self.n += 1
    def flush(self, kidx, wave_sgpr, srd=24):
        if not STAMPS: return
        a = self.a
        a(f"s_lshl_b32 s82, s2, 3")
        a(f"s_add_u32 s82, s82, s{wave_sgpr}")
        a(f"s_lshl_b32 s82, s82, 6")
        a(f"s_add_u32 s82, s82, {WS_DBG + kidx*0x80000}")
        a(f"v_mov_b32 v250, 0")
        for i in range(self.n):
            a(f"v_mov_b32 v251, s{84+i}")
            a(f"buffer_store_dword v251, v250, s[{srd}:{srd+3}], s82 offen offset:{4*i}")

def sum_stride8(a, v, t1, t2):
    a(f"v_add_f32_dpp v{v}, v{v}, v{v} row_ror:8 row_mask:0xf bank_mask:0xf")
    a(f"v_mov_b32 v{t1}, v{v}")
    a(f"v_mov_b32 v{t2}, v{v}")
    a("s_nop 1")
    a(f"v_permlane16_swap_b32 v{t1}, v{t2}")
    a("s_nop 1")
    a(f"v_add_f32 v{v}, v{t1}, v{t2}")
    a(f"v_mov_b32 v{t1}, v{v}")
    a(f"v_mov_b32 v{t2}, v{v}")
    a("s_nop 1")
    a(f"v_permlane32_swap_b32 v{t1}, v{t2}")
    a("s_nop 1")
    a(f"v_add_f32 v{v}, v{t1}, v{t2}")

K0_LDS = 4096
def gen_k0():
    a = A()
    a.lab("k0_kernel")
    a("s_cmp_ge_u32 s2, 256")
    a("s_cbranch_scc1 K0_END")
    a("s_load_dwordx4 s[4:7], s[0:1], 0")
    a("s_load_dwordx4 s[8:11], s[0:1], 16")
    a("s_load_dwordx2 s[12:13], s[0:1], 40")
    a("s_load_dwordx2 s[14:15], s[0:1], 88")
    a("v_and_b32 v1, 63, v0")
    a("v_lshrrev_b32 v4, 6, v0")
    a("v_and_b32 v2, 31, v1")
    a("v_lshrrev_b32 v3, 5, v1")
    a("v_readfirstlane_b32 s30, v4")
    a("v_and_b32 v4, 7, v0")
    a("v_lshrrev_b32 v5, 3, v0")
    a("s_lshl_b32 s31, s2, 3")
    a("v_add_u32 v6, s31, v4")
    a("v_mul_u32_u24 v7, 1280, v6")
    a("v_lshl_add_u32 v7, v5, 4, v7")
    a("v_cmp_gt_u32 vcc, 16, v5")
    a(f"v_mov_b32 v80, {OOB}")
    a("v_lshlrev_b32 v81, 4, v5")
    a("v_cndmask_b32 v82, v80, v7, vcc")
    a("s_waitcnt lgkmcnt(0)")
    srd(a, 16, 4, 2621440)
    srd(a, 20, 6, 2457600)
    srd(a, 24, 14, WS_BYTES)
    srd(a, 36, 8, 25600)
    srd(a, 40, 10, 819200)
    srd(a, 44, 12, 1280)
    st = Stamper(a); st()
    a("buffer_load_dwordx4 v[8:11], v7, s[16:19], 0 offen")
    a("buffer_load_dwordx4 v[12:15], v7, s[16:19], 0 offen offset:512")
    a("buffer_load_dwordx4 v[16:19], v82, s[16:19], 0 offen offset:1024")
    a("buffer_load_dwordx4 v[20:23], v81, s[44:47], 0 offen")
    a("buffer_load_dwordx4 v[24:27], v81, s[44:47], 0 offen offset:512")
    a("buffer_load_dwordx4 v[28:31], v81, s[44:47], 0 offen offset:1024")
    def job_decode(i, sb):
        a(f"s_add_u32 s32, s2, {256*i}")
        a(f"s_mul_i32 s33, s32, 205")
        a(f"s_lshr_b32 s33, s33, 12")
        a(f"s_mul_i32 s34, s33, 20")
        a(f"s_sub_u32 s{sb}, s32, s34")
        a(f"s_lshl_b32 s33, s33, 2")
        a(f"s_add_u32 s33, s33, s30")
        a(f"s_lshr_b32 s{sb+1}, s33, 5")
        a(f"s_and_b32 s{sb+2}, s33, 31")
    def job_load(sb, VA, VP):
        a(f"s_mul_i32 s32, s{sb}, {32*3840}")
        a(f"s_mul_i32 s33, s{sb+1}, 1280")
        a(f"s_add_u32 s32, s32, s33")
        a(f"s_mul_i32 s33, s{sb+2}, 40")
        a(f"s_add_u32 s32, s32, s33")
        a(f"buffer_load_dwordx4 v[{VA}:{VA+3}], v83, s[20:23], s32 offen")
        a(f"buffer_load_dwordx2 v[{VA+4}:{VA+5}], v84, s[20:23], s32 offen offset:32")
        a(f"s_mul_i32 s33, s{sb+2}, 800")
        for j in range(8):
            a(f"buffer_load_ushort v{VP+j}, v85, s[36:39], s33 offen offset:{40*j}")
        for j in range(4):
            a(f"buffer_load_ushort v{VP+8+j}, v86, s[36:39], s33 offen offset:{640+40*j}")
    a("v_mul_u32_u24 v83, 3840, v2")
    a("v_cmp_eq_u32 vcc, 0, v3")
    a("s_nop 0")
    a("v_cndmask_b32 v84, v80, v83, vcc")
    a("v_lshl_add_u32 v83, v3, 4, v83")
    a("v_mul_u32_u24 v85, 320, v3")
    a("v_lshl_add_u32 v85, v2, 1, v85")
    a("v_lshlrev_b32 v86, 1, v2")
    a("v_cmp_gt_u32 s[32:33], 20, v2")
    a("s_and_b64 s[34:35], s[32:33], vcc")
    a("v_cndmask_b32 v85, v80, v85, s[32:33]")
    a("v_cndmask_b32 v86, v80, v86, s[34:35]")
    job_decode(0, 48); job_load(48, 32, 40)
    a("s_cmp_ge_u32 s2, 224")
    a("s_cbranch_scc1 K0_NOJ1L")
    job_decode(1, 56); job_load(56, 52, 60)
    a.lab("K0_NOJ1L")
    a("s_lshl_b32 s60, s2, 2")
    a("s_add_u32 s60, s60, s30")
    a("s_cmp_ge_u32 s60, 800")
    a("s_cbranch_scc1 K0_NOWOL")
    a("s_mul_i32 s32, s60, 41")
    a("s_lshr_b32 s32, s32, 13")
    a("s_mul_i32 s33, s32, 200")
    a("s_sub_u32 s33, s60, s33")
    a("s_mul_i32 s34, s33, 205")
    a("s_lshr_b32 s34, s34, 11")
    a("s_mul_i32 s35, s34, 10")
    a("s_sub_u32 s35, s33, s35")
    a("v_mul_u32_u24 v87, 12800, v3")
    a("s_lshl_b32 s34, s34, 6")
    a("v_lshl_add_u32 v87, v2, 1, v87")
    a("v_add_u32 v87, s34, v87")
    for j in range(8):
        a(f"s_lshl_b32 s61, s35, 3")
        a(f"s_add_u32 s61, s61, {j}")
        a(f"s_mul_i32 s62, s61, 205")
        a(f"s_lshr_b32 s62, s62, 11")
        a(f"s_mul_i32 s63, s62, 10")
        a(f"s_sub_u32 s63, s61, s63")
        a(f"s_lshl_b32 s64, s32, 3")
        a(f"s_add_u32 s64, s64, s62")
        a(f"s_mul_i32 s64, s64, 20")
        a(f"s_add_u32 s64, s64, s63")
        a(f"s_mul_i32 s64, s64, 1280")
        a(f"buffer_load_ushort v{72+j}, v87, s[40:43], s64 offen")
    a.lab("K0_NOWOL")
    st()
    a("s_waitcnt vmcnt(14)")
    XF = 88
    for i in range(12):
        a(f"v_lshlrev_b32 v{XF+2*i}, 16, v{8+i}")
        a(f"v_and_b32 v{XF+2*i+1}, 0xffff0000, v{8+i}")
        a(f"v_lshlrev_b32 v{112+2*i}, 16, v{20+i}")
        a(f"v_and_b32 v{113+2*i}, 0xffff0000, v{20+i}")
    S, Q, RW, SW = 136, 137, 138, 139
    a(f"v_add_f32 v{S}, v{XF}, v{XF+1}")
    a(f"v_mul_f32 v{Q}, v{XF}, v{XF}")
    a(f"v_mul_f32 v{RW}, v{XF}, v112")
    a(f"v_add_f32 v{SW}, v112, v113")
    a(f"v_fmac_f32 v{Q}, v{XF+1}, v{XF+1}")
    a(f"v_fmac_f32 v{RW}, v{XF+1}, v113")
    for i in range(2, 24):
        a(f"v_add_f32 v{S}, v{S}, v{XF+i}")
        a(f"v_fmac_f32 v{Q}, v{XF+i}, v{XF+i}")
        a(f"v_fmac_f32 v{RW}, v{XF+i}, v{112+i}")
        a(f"v_add_f32 v{SW}, v{SW}, v{112+i}")
    for v in (S, Q, RW, SW): sum_stride8(a, v, 140, 141)
    a("v_lshlrev_b32 v140, 4, v4")
    a("s_lshl_b32 s32, s30, 7")
    a("v_add_u32 v141, s32, v140")
    a(f"ds_write_b128 v141, v[{S}:{S+3}]")
    a("s_waitcnt lgkmcnt(0)")
    a("s_barrier")
    for wv in range(4): a(f"ds_read_b128 v[{144+4*wv}:{147+4*wv}], v140 offset:{128*wv}")
    a("s_waitcnt lgkmcnt(0)")
    for i in range(4):
        a(f"v_add_f32 v{144+i}, v{144+i}, v{148+i}")
        a(f"v_add_f32 v{152+i}, v{152+i}, v{156+i}")
        a(f"v_add_f32 v{144+i}, v{144+i}, v{152+i}")
    MB, RSTD = 160, 161
    a(f"s_mov_b32 s32, 0x3acccccd")
    a(f"v_mul_f32 v{MB}, s32, v144")
    a(f"v_mul_f32 v162, s32, v145")
    a(f"v_fma_f32 v162, -v{MB}, v{MB}, v162")
    a(f"v_max_f32 v162, 0, v162")
    round_bf16(a, MB); round_bf16(a, 162)
    a(f"v_add_f32 v162, 0x3727c5ac, v162")
    round_bf16(a, 162)
    a(f"v_sqrt_f32 v162, v162")
    a("s_nop 0")
    round_bf16(a, 162)
    a(f"v_rcp_f32 v{RSTD}, v162")
    a("s_nop 0")
    a(f"v_fma_f32 v163, -v{MB}, v147, v146")
    a(f"v_mul_f32 v163, v163, v{RSTD}")
    for i in range(24): a(f"v_sub_f32 v{XF+i}, v{XF+i}, v{MB}")
    for i in range(12):
        a(f"v_cvt_pk_bf16_f32 v{8+i}, v{XF+2*i}, v{XF+2*i+1}")
        a(f"v_lshlrev_b32 v{XF+2*i}, 16, v{8+i}")
        a(f"v_and_b32 v{XF+2*i+1}, 0xffff0000, v{8+i}")
        a(f"v_mul_f32 v{XF+2*i}, v{XF+2*i}, v{RSTD}")
        a(f"v_mul_f32 v{XF+2*i+1}, v{XF+2*i+1}, v{RSTD}")
        a(f"v_cvt_pk_bf16_f32 v{8+i}, v{XF+2*i}, v{XF+2*i+1}")
    a("v_lshrrev_b32 v164, 5, v6")
    a("v_mul_u32_u24 v164, 40960, v164")
    a("v_and_b32 v165, 31, v6")
    a("v_lshl_add_u32 v164, v165, 4, v164")
    a("v_lshl_add_u32 v164, v5, 9, v164")
    a("v_cmp_gt_u32 vcc, 16, v5")
    a(f"s_mov_b32 s32, {WS_XF}")
    a("v_cndmask_b32 v165, v80, v164, vcc")
    a("buffer_store_dwordx4 v[8:11], v164, s[24:27], s32 offen")
    a(f"s_mov_b32 s33, {WS_XF + 16384}")
    a("buffer_store_dwordx4 v[12:15], v164, s[24:27], s33 offen")
    a(f"s_mov_b32 s33, {WS_XF + 32768}")
    a("buffer_store_dwordx4 v[16:19], v165, s[24:27], s33 offen")
    a("s_cmp_lg_u32 s30, 0")
    a("s_cbranch_scc1 K0_NOKEY")
    a("v_cvt_pk_bf16_f32 v166, v163, v163")
    a("v_and_b32 v166, 0xffff, v166")
    a("v_and_b32 v167, 0x8000, v166")
    a("v_cmp_eq_u32 vcc, 0, v167")
    a("v_mov_b32 v167, 0xffff")
    a("v_mov_b32 v168, 0x8000")
    a("v_cndmask_b32 v167, v167, v168, vcc")
    a("v_xor_b32 v166, v166, v167")
    a("v_lshlrev_b32 v166, 16, v166")
    a("v_sub_u32 v167, 0xffff, v6")
    a("v_or_b32 v166, v166, v167")
    a("s_nop 1")
    a("v_max_u32_dpp v166, v166, v166 quad_perm:[1,0,3,2] row_mask:0xf bank_mask:0xf")
    a("s_nop 1")
    a("v_max_u32_dpp v166, v166, v166 quad_perm:[2,3,0,1] row_mask:0xf bank_mask:0xf")
    a("s_nop 1")
    a("v_max_u32_dpp v166, v166, v166 row_ror:4 row_mask:0xf bank_mask:0xf")
    a("v_lshlrev_b32 v167, 3, v6")
    a(f"v_mov_b32 v168, v{MB}"); a(f"v_mov_b32 v169, v{RSTD}")
    a("v_cmp_gt_u32 vcc, 8, v1")
    a("s_and_saveexec_b64 s[32:33], vcc")
    a(f"s_mov_b32 s34, {WS_STATS}")
    a("buffer_store_dwordx2 v[168:169], v167, s[24:27], s34 offen")
    a("v_cmp_eq_u32 vcc, 0, v1")
    a("s_and_b64 exec, exec, vcc")
    a("s_lshl_b32 s34, s2, 2")
    a(f"s_add_u32 s34, s34, {WS_KEYS}")
    a("v_mov_b32 v167, 0")
    a("buffer_store_dword v166, v167, s[24:27], s34 offen")
    a("s_mov_b64 exec, s[32:33]")
    a.lab("K0_NOKEY")
    st()
    def job_compute(sb, VA, VP, lab):
        a("s_waitcnt vmcnt(0)")
        a(f"v_mov_b32 v{VA+6}, 0"); a(f"v_mov_b32 v{VA+7}, 0")
        B0 = 170; B1 = 174
        a(f"s_cmp_eq_u32 s{sb+1}, 2")
        a(f"s_cbranch_scc1 {lab}_ID")
        for i in range(4): a(f"v_lshl_or_b32 v{B0+i}, v{VP+2*i+1}, 16, v{VP+2*i}")
        for i in range(2): a(f"v_lshl_or_b32 v{B1+i}, v{VP+8+2*i+1}, 16, v{VP+8+2*i}")
        a(f"s_branch {lab}_B")
        a.lab(f"{lab}_ID")
        a(f"v_lshlrev_b32 v178, 3, v3")
        a(f"v_sub_u32 v178, v2, v178")
        a(f"v_mov_b32 v179, 0x3f80")
        a(f"v_mov_b32 v180, 0x3f800000")
        for i in range(4):
            a(f"v_cmp_eq_u32 vcc, {2*i}, v178")
            a(f"v_cmp_eq_u32 s[32:33], {2*i+1}, v178")
            a("s_nop 0")
            a(f"v_cndmask_b32 v{B0+i}, 0, v179, vcc")
            a(f"v_cndmask_b32 v181, 0, v180, s[32:33]")
            a(f"v_or_b32 v{B0+i}, v{B0+i}, v181")
        a(f"v_lshl_add_u32 v178, v3, 6, v2")
        for i in range(2):
            a(f"v_cmp_eq_u32 vcc, {16+2*i}, v178")
            a(f"v_cmp_eq_u32 s[32:33], {17+2*i}, v178")
            a("s_nop 0")
            a(f"v_cndmask_b32 v{B1+i}, 0, v179, vcc")
            a(f"v_cndmask_b32 v181, 0, v180, s[32:33]")
            a(f"v_or_b32 v{B1+i}, v{B1+i}, v181")
        a.lab(f"{lab}_B")
        a(f"v_mov_b32 v{B1+2}, 0"); a(f"v_mov_b32 v{B1+3}, 0")
        D = 184
        a("s_nop 1")
        a(f"v_mfma_f32_32x32x16_bf16 v[{D}:{D+15}], v[{VA}:{VA+3}], v[{B0}:{B0+3}], 0")
        a(f"v_mfma_f32_32x32x16_bf16 v[{D}:{D+15}], v[{VA+4}:{VA+7}], v[{B1}:{B1+3}], v[{D}:{D+15}]")
        a(f"s_cmp_eq_u32 s{sb+1}, 1")
        a(f"s_cselect_b32 s32, 32, 0")
        a(f"v_add_u32 v178, s32, v2")
        a(f"v_mov_b32 v179, 20")
        a(f"s_cmp_eq_u32 s{sb+1}, 2")
        a(f"s_cbranch_scc0 {lab}_O")
        a(f"v_cmp_gt_u32 vcc, 12, v2")
        a(f"v_add_u32 v178, 20, v2")
        a(f"v_add_u32 v179, 40, v2")
        a(f"v_cndmask_b32 v178, v179, v178, vcc")
        a(f"v_mov_b32 v179, 24")
        a.lab(f"{lab}_O")
        a(f"s_and_b32 s32, s{sb+2}, 1")
        a(f"s_lshl_b32 s32, s32, 2")
        a(f"v_lshrrev_b32 v180, 4, v178")
        a(f"v_lshlrev_b32 v180, 10, v180")
        a(f"v_bfe_u32 v181, v178, 2, 2")
        a(f"v_lshlrev_b32 v181, 3, v181")
        a(f"v_and_b32 v182, 3, v178")
        a(f"v_add3_u32 v181, v181, v182, s32")
        a(f"v_lshl_add_u32 v181, v3, 5, v181")
        a(f"v_lshl_add_u32 v180, v181, 4, v180")
        a(f"v_cmp_lt_u32 vcc, v2, v179")
        a("s_nop 0")
        a(f"v_cndmask_b32 v180, v80, v180, vcc")
        a(f"s_lshr_b32 s32, s{sb+2}, 1")
        a(f"s_mul_i32 s32, s32, 40")
        a(f"s_lshl_b32 s33, s{sb}, 1")
        a(f"s_add_u32 s32, s32, s33")
        a(f"s_lshl_b32 s32, s32, 12")
        a(f"s_add_u32 s32, s32, {WS_WF}")
        a(f"s_add_u32 s33, s32, 4096")
        a("s_nop 7")
        for i in range(8): a(f"v_cvt_pk_bf16_f32 v{200+i}, v{D+2*i}, v{D+2*i+1}")
        a("s_nop 1")
        a("v_permlane32_swap_b32 v200, v202")
        a("v_permlane32_swap_b32 v201, v203")
        a("v_permlane32_swap_b32 v204, v206")
        a("v_permlane32_swap_b32 v205, v207")
        a("s_nop 1")
        a(f"buffer_store_dwordx4 v[200:203], v180, s[24:27], s32 offen")
        a(f"buffer_store_dwordx4 v[204:207], v180, s[24:27], s33 offen")
        a("s_nop 1")
    job_compute(48, 32, 40, "K0_J0")
    a("s_cmp_ge_u32 s2, 224")
    a("s_cbranch_scc1 K0_NOJ1")
    job_compute(56, 52, 60, "K0_J1")
    a.lab("K0_NOJ1")
    a("s_cmp_ge_u32 s60, 800")
    a("s_cbranch_scc1 K0_END2")
    for i in range(4): a(f"v_lshl_or_b32 v{8+i}, v{73+2*i}, 16, v{72+2*i}")
    a("v_lshlrev_b32 v16, 4, v1")
    a("s_lshl_b32 s32, s60, 10")
    a(f"s_add_u32 s32, s32, {WS_WOF}")
    a("buffer_store_dwordx4 v[8:11], v16, s[24:27], s32 offen")
    a.lab("K0_END2")
    st(); st.flush(0, 30)
    a.lab("K0_END")
    a("s_endpgm")
    return a.text()


K1_LDS = 131072
L_PK = 0; L_V = 32768; L_MOE = 65536
def wave_max_u32(a, v, t1, t2):
    a("s_nop 1")
    a(f"v_max_u32_dpp v{v}, v{v}, v{v} quad_perm:[1,0,3,2] row_mask:0xf bank_mask:0xf")
    a("s_nop 1")
    a(f"v_max_u32_dpp v{v}, v{v}, v{v} quad_perm:[2,3,0,1] row_mask:0xf bank_mask:0xf")
    a("s_nop 1")
    a(f"v_max_u32_dpp v{v}, v{v}, v{v} row_ror:4 row_mask:0xf bank_mask:0xf")
    a("s_nop 1")
    a(f"v_max_u32_dpp v{v}, v{v}, v{v} row_ror:8 row_mask:0xf bank_mask:0xf")
    for sw in ("v_permlane16_swap_b32", "v_permlane32_swap_b32"):
        a(f"v_mov_b32 v{t1}, v{v}")
        a(f"v_mov_b32 v{t2}, v{v}")
        a("s_nop 1")
        a(f"{sw} v{t1}, v{t2}")
        a("s_nop 1")
        a(f"v_max_u32 v{v}, v{t1}, v{t2}")

def gen_k1():
    a = A()
    a.lab("k1_kernel")
    a("s_cmp_ge_u32 s2, 256")
    a("s_cbranch_scc1 K1_END")
    a("s_load_dwordx4 s[8:11], s[0:1], 48")
    a("s_load_dwordx2 s[12:13], s[0:1], 88")
    a("s_and_b32 s14, s2, 7")
    a("s_lshr_b32 s15, s2, 3")
    a("s_and_b32 s28, s14, 1")
    a("s_lshl_b32 s28, s28, 3")
    a("s_and_b32 s29, s15, 7")
    a("s_add_u32 s28, s28, s29")
    a("s_lshr_b32 s29, s14, 1")
    a("s_lshl_b32 s29, s29, 2")
    a("s_lshr_b32 s15, s15, 3")
    a("s_add_u32 s29, s29, s15")
    a("v_lshrrev_b32 v1, 6, v0")
    a("v_and_b32 v2, 63, v0")
    a("v_lshlrev_b32 v8, 4, v2")
    a("v_readfirstlane_b32 s30, v1")
    LANE=2; L31=3; KH=4; R4=5; C4=6; MG=7; L16=8
    a(f"v_and_b32 v{L31}, 31, v{LANE}")
    a(f"v_lshrrev_b32 v{KH}, 5, v{LANE}")
    a(f"v_bfe_u32 v{R4}, v{LANE}, 2, 2")
    a(f"v_and_b32 v{C4}, 3, v{LANE}")
    a(f"v_bfe_u32 v{MG}, v{LANE}, 4, 1")
    a("s_and_b32 s31, s30, 3")
    a("s_lshr_b32 s32, s30, 2")
    a("s_mul_i32 s62, s2, 171")
    a("s_lshr_b32 s62, s62, 12")
    a("s_mul_i32 s63, s62, 24")
    a("s_sub_u32 s63, s2, s63")
    a("v_lshrrev_b32 v9, 3, v0")
    a("v_and_b32 v10, 7, v0")
    a("s_lshl_b32 s34, s62, 6")
    a("v_add_u32 v11, s34, v9")
    a("v_mul_u32_u24 v12, 3072, v11")
    a("v_lshl_add_u32 v12, v10, 4, v12")
    a("s_lshl_b32 s34, s63, 7")
    a("v_add_u32 v12, s34, v12")
    a("s_waitcnt lgkmcnt(0)")
    srd(a, 24, 12, WS_BYTES)
    srd(a, 16, 8, 1966080)
    srd(a, 20, 10, 1966080)
    st = Stamper(a); st()
    GW=100; UW=104; KY=108; XS=112
    a(f"buffer_load_dwordx4 v[{GW}:{GW+3}], v12, s[16:19], 0 offen")
    a(f"buffer_load_dwordx4 v[{UW}:{UW+3}], v12, s[20:23], 0 offen")
    a(f"s_mov_b32 s34, {WS_KEYS}")
    a(f"buffer_load_dwordx4 v[{KY}:{KY+3}], v{L16}, s[24:27], s34 offen")
    a("s_mul_i32 s48, s29, 163840")
    a("s_lshl_b32 s34, s30, 11")
    a("s_add_u32 s48, s48, s34")
    a(f"s_add_u32 s48, s48, {WS_WF}")
    a("s_lshl_b32 s49, s28, 2")
    a("s_add_u32 s49, s49, s31")
    a("s_mul_i32 s49, s49, 40960")
    a("s_lshl_b32 s35, s32, 11")
    a("s_add_u32 s49, s49, s35")
    a(f"s_add_u32 s49, s49, {WS_XF}")
    a("s_mov_b32 s50, s34")
    a("s_lshl_b32 s51, s31, 12")
    a("s_add_u32 s51, s51, s35")
    a("s_add_u32 s51, s51, 16384")
    def dma(kt):
        stg = kt % 4
        for e in range(2):
            a(f"s_add_u32 s54, s48, {kt*16384 + e*1024}")
            a(f"s_add_u32 m0, s50, {stg*32768 + e*1024}")
            a(f"s_nop 0")
            a(f"buffer_load_dwordx4 v{L16}, s[24:27], s54 offen lds")
        for e in range(2):
            a(f"s_add_u32 s54, s49, {kt*4096 + e*1024}")
            a(f"s_add_u32 m0, s51, {stg*32768 + e*1024}")
            a(f"s_nop 0")
            a(f"buffer_load_dwordx4 v{L16}, s[24:27], s54 offen lds")
    for kt in range(3): dma(kt)
    AR=[13,14]; BR=[15,16]
    a("s_lshl_b32 s34, s32, 11")
    a(f"v_add_u32 v{AR[0]}, s34, v{L16}")
    a(f"v_add_u32 v{AR[1]}, 0x10000, v{AR[0]}")
    a("s_lshl_b32 s34, s31, 12")
    a("s_add_u32 s34, s34, 16384")
    a(f"v_add_u32 v{BR[0]}, s34, v{L16}")
    a(f"v_add_u32 v{BR[1]}, 0x10000, v{BR[0]}")
    ACC0=64; ACC1=80
    for i in range(32): a(f"v_mov_b32 v{ACC0+i}, 0")
    a("s_waitcnt vmcnt(12)")
    a(f"v_max_u32 v{KY}, v{KY}, v{KY+1}")
    a(f"v_max_u32 v{KY+2}, v{KY+2}, v{KY+3}")
    a(f"v_max_u32 v{KY}, v{KY}, v{KY+2}")
    wave_max_u32(a, KY, 18, 19)
    a("s_nop 0")
    a(f"v_readfirstlane_b32 s46, v{KY}")
    a("s_nop 3")
    a("s_and_b32 s47, s46, 0xffff")
    a("s_sub_u32 s47, 0xffff, s47")
    a("s_or_b32 s34, s2, s30")
    a("s_cmp_lg_u32 s34, 0")
    a("s_cbranch_scc1 K1_NOFK")
    a(f"s_mov_b32 s34, {WS_FKEY}")
    a("v_mov_b32 v18, 0")
    a(f"buffer_store_dword v{KY}, v18, s[24:27], s34 offen")
    a.lab("K1_NOFK")
    a("s_lshr_b32 s34, s47, 5")
    a("s_mul_i32 s34, s34, 40960")
    a("s_and_b32 s35, s47, 31")
    a("s_lshl_b32 s35, s35, 4")
    a("s_add_u32 s34, s34, s35")
    a(f"s_add_u32 s34, s34, {WS_XF}")
    a("v_lshrrev_b32 v18, 3, v11")
    a("v_lshlrev_b32 v18, 9, v18")
    a("v_and_b32 v19, 7, v11")
    a("v_lshl_add_u32 v18, v19, 1, v18")
    a(f"buffer_load_ushort v{XS}, v18, s[24:27], s34 offen")
    XF=[40,44]; AF=[[48,52],[56,60]]
    def reads(kt, t, buf):
        stg = kt % 4; hi = stg >> 1; off = (stg & 1)*32768
        a(f"ds_read_b128 v[{XF[buf]}:{XF[buf]+3}], v{BR[hi]} offset:{off + t*1024}")
        for ti in range(2):
            a(f"ds_read_b128 v[{AF[buf][ti]}:{AF[buf][ti]+3}], v{AR[hi]} offset:{off + t*4096 + ti*1024}")
    st()
    a("s_waitcnt vmcnt(9)")
    a("s_barrier")
    st()
    reads(0, 0, 0)
    step = 0
    for kt in range(10):
        for t in range(4):
            buf = step & 1
            last = (kt == 9 and t == 3)
            if t == 3 and kt < 9:
                n = 5 if kt < 2 else (4 if kt < 8 else 0)
                a(f"s_waitcnt vmcnt({n}) lgkmcnt(0)")
                a("s_barrier")
                if kt + 3 < 10: dma(kt + 3)
            if not last:
                nkt, nt = (kt, t + 1) if t < 3 else (kt + 1, 0)
                reads(nkt, nt, buf ^ 1)
                a("s_waitcnt lgkmcnt(3)")
            else:
                a("s_waitcnt lgkmcnt(0)")
            x = XF[buf]
            a(f"v_mfma_f32_32x32x16_bf16 v[{ACC0}:{ACC0+15}], v[{AF[buf][0]}:{AF[buf][0]+3}], v[{x}:{x+3}], v[{ACC0}:{ACC0+15}]")
            a(f"v_mfma_f32_32x32x16_bf16 v[{ACC1}:{ACC1+15}], v[{AF[buf][1]}:{AF[buf][1]+3}], v[{x}:{x+3}], v[{ACC1}:{ACC1+15}]")
            step += 1
    st()
    a("s_barrier")
    a(f"v_lshlrev_b32 v{XS}, 16, v{XS}")
    for (W, base) in ((GW, 116), (UW, 124)):
        for d in range(4):
            a(f"v_lshlrev_b32 v{base+2*d}, 16, v{W+d}")
            a(f"v_and_b32 v{base+2*d+1}, 0xffff0000, v{W+d}")
    for i in range(16): a(f"v_mul_f32 v{116+i}, v{116+i}, v{XS}")
    a("v_lshlrev_b32 v18, 9, v9")
    a("v_lshl_add_u32 v18, v10, 5, v18")
    a(f"v_add_u32 v18, {L_MOE}, v18")
    a("ds_write_b128 v18, v[116:119]")
    a("ds_write_b128 v18, v[120:123] offset:16")
    a("ds_write_b128 v18, v[124:127] offset:256")
    a("ds_write_b128 v18, v[128:131] offset:272")
    T0=9; T1=10; T2=11; T3=12; ROW=17
    a(f"s_lshl_b32 s34, s31, 5")
    a(f"v_add_u32 v{ROW}, s34, v{L31}")
    VV=124
    for i in range(6): a(f"v_cvt_pk_bf16_f32 v{VV+i}, v{ACC1+4+2*i}, v{ACC1+5+2*i}")
    P = [ACC0+i for i in range(16)] + [ACC1+i for i in range(4)]
    E = [156+i for i in range(40)]
    OUT = [132+i for i in range(20)]
    softmax_pm(a, P, E, [18,19,20,21,22,23], OUT)
    st()
    a(f"v_mul_u32_u24 v{T0}, 192, v{ROW}")
    a(f"v_lshl_add_u32 v{T1}, v{KH}, 6, v{T0}")
    a(f"v_add_u32 v{T1}, {L_V}, v{T1}")
    a(f"s_cmp_eq_u32 s32, 0")
    a(f"s_cbranch_scc0 K1_E5B")
    a(f"ds_write_b128 v{T1}, v[{VV}:{VV+3}]")
    a(f"ds_write_b64 v{T1}, v[{VV+4}:{VV+5}] offset:16")
    a(f"s_lshl_b32 s34, s28, 2")
    a(f"s_add_u32 s34, s34, s31")
    a(f"s_lshl_b32 s34, s34, 4")
    a(f"s_add_u32 s34, s34, s29")
    a(f"s_mul_i32 s34, s34, 5120")
    a(f"v_mul_u32_u24 v{T3}, 2560, v{KH}")
    a(f"v_lshl_add_u32 v{T3}, v{L31}, 4, v{T3}")
    for j in range(5):
        a(f"buffer_store_dwordx4 v[{OUT[4*j]}:{OUT[4*j]+3}], v{T3}, s[24:27], s34 offen offset:{512*j}")
    a(f"s_branch K1_E5C")
    a.lab("K1_E5B")
    a(f"ds_write_b64 v{T1}, v[{VV}:{VV+1}] offset:24")
    a(f"ds_write_b64 v{T1}, v[{VV+2}:{VV+3}] offset:32")
    a(f"v_mov_b32 v18, 0x3f80"); a(f"v_mov_b32 v19, 0")
    a(f"ds_write_b64 v{T1}, v[18:19] offset:40")
    a(f"v_mul_u32_u24 v{T3}, 80, v{KH}")
    a(f"v_add_u32 v{T3}, v{T3}, v{T0}")
    for j in range(5):
        a(f"ds_write_b128 v{T3}, v[{OUT[4*j]}:{OUT[4*j]+3}] offset:{L_PK + 16*j}")
    a.lab("K1_E5C")
    a("s_waitcnt lgkmcnt(0)")
    a("s_barrier")
    st()
    a(f"s_cmp_ge_u32 s30, 4")
    a(f"s_cbranch_scc1 K1_MOE")
    a(f"s_and_b32 s60, s30, 1")
    a(f"s_lshr_b32 s61, s30, 1")
    a(f"v_lshl_add_u32 v{T0}, v{KH}, 3, v{R4}")
    a(f"v_mul_u32_u24 v{T0}, 192, v{T0}")
    a(f"v_lshl_add_u32 v{T1}, v{MG}, 2, v{C4}")
    a(f"v_lshl_add_u32 v{T0}, v{T1}, 3, v{T0}")
    a(f"s_lshl_b32 s34, s60, 6")
    a(f"s_add_u32 s34, s34, {L_V}")
    a(f"v_add_u32 v{T2}, s34, v{T0}")
    a(f"s_mul_i32 s34, s60, 80")
    a(f"s_lshl_b32 s35, s61, 6")
    a(f"s_add_u32 s34, s34, s35")
    a(f"s_add_u32 s34, s34, {L_PK}")
    a(f"v_add_u32 v{T3}, s34, v{T0}")
    KA=112; KB=144; D0=64
    for ks in range(8):
        for sec in range(2):
            a(f"ds_read_b64_tr_b16 v[{KA+4*ks+2*sec}:{KA+4*ks+2*sec+1}], v{T2} offset:{ks*3072+sec*768}")
            a(f"ds_read_b64_tr_b16 v[{KB+4*ks+2*sec}:{KB+4*ks+2*sec+1}], v{T3} offset:{ks*3072+sec*768}")
    for ks in range(8):
        a(f"s_waitcnt lgkmcnt({min(15, 4*(7-ks))})")
        c = "0" if ks == 0 else f"v[{D0}:{D0+15}]"
        a(f"v_mfma_f32_32x32x16_bf16 v[{D0}:{D0+15}], v[{KA+4*ks}:{KA+4*ks+3}], v[{KB+4*ks}:{KB+4*ks+3}], {c}")
    a(f"s_lshl_b32 s34, s28, 5")
    a(f"s_lshl_b32 s35, s29, 1")
    a(f"s_add_u32 s34, s34, s35")
    a(f"s_add_u32 s34, s34, s60")
    a(f"s_lshl_b32 s34, s34, 1")
    a(f"s_add_u32 s34, s34, s61")
    a(f"s_mul_i32 s34, s34, 3072")
    a(f"s_add_u32 s34, s34, {WS_KVP}")
    a(f"v_lshlrev_b32 v{T0}, 2, v{LANE}")
    a("s_nop 15"); a("s_nop 3")
    for r in range(12):
        a(f"buffer_store_dword v{D0+r}, v{T0}, s[24:27], s34 offen offset:{256*r}")
    a("s_branch K1_END2")
    a.lab("K1_MOE")
    a(f"s_cmp_ge_u32 s30, 6")
    a(f"s_cbranch_scc1 K1_END2")
    a(f"s_cmp_ge_u32 s2, 240")
    a(f"s_cbranch_scc1 K1_END2")
    a("v_and_b32 v18, 127, v0")
    a("v_lshlrev_b32 v19, 2, v18")
    a(f"v_add_u32 v19, {L_MOE}, v19")
    for r in range(64): a(f"ds_read_b32 v{112+r}, v19 offset:{512*r}")
    for r in range(1, 64):
        if r in (1, 17, 33, 49): a(f"s_waitcnt lgkmcnt({min(15, 63 - (r+15))})" if r + 15 < 63 else "s_waitcnt lgkmcnt(0)")
        a(f"v_add_f32 v112, v112, v{112+r}")
    a("v_lshrrev_b32 v19, 6, v18")
    a("v_mul_u32_u24 v19, 6144, v19")
    a("v_and_b32 v20, 63, v18")
    a("v_lshl_add_u32 v19, v20, 2, v19")
    a("s_mul_i32 s34, s62, 12288")
    a("s_lshl_b32 s35, s63, 8")
    a("s_add_u32 s34, s34, s35")
    a(f"s_add_u32 s34, s34, {WS_GU}")
    a("buffer_store_dword v112, v19, s[24:27], s34 offen")
    a.lab("K1_END2")
    st(); st.flush(1, 30)
    a.lab("K1_END")
    a("s_endpgm")
    return a.text()


K2_LDS = 16384
def gen_k2():
    a = A()
    a.lab("k2_kernel")
    a("s_cmp_ge_u32 s2, 88")
    a("s_cbranch_scc1 K2_END")
    a("s_load_dwordx2 s[12:13], s[0:1], 64")
    a("s_load_dwordx2 s[14:15], s[0:1], 88")
    a("v_lshrrev_b32 v1, 6, v0")
    a("v_and_b32 v2, 63, v0")
    a("s_nop 0")
    a("v_readfirstlane_b32 s92, v1")
    a("s_waitcnt lgkmcnt(0)")
    srd(a, 24, 14, WS_BYTES)
    st = Stamper(a); st()
    a("s_cmp_ge_u32 s2, 24")
    a("s_cbranch_scc1 K2_MOE")
    a("s_lshl_b32 s31, s2, 2")
    a("s_add_u32 s31, s31, s92")
    a("s_mul_i32 s32, s31, 43")
    a("s_lshr_b32 s32, s32, 8")
    a("s_mul_i32 s33, s32, 6")
    a("s_sub_u32 s33, s31, s33")
    a("s_cmp_ge_u32 s33, 3")
    a("s_cselect_b32 s34, 1, 0")
    a("s_sub_u32 s35, s33, s34")
    a("s_lshl_b32 s36, s32, 1")
    a("s_add_u32 s36, s36, s34")
    a("v_and_b32 v3, 31, v2")
    a("v_lshrrev_b32 v4, 5, v2")
    a("s_lshl_b32 s37, s35, 1")
    a("v_add_u32 v5, s37, v4")
    a("v_cmp_le_u32 vcc, 5, v5")
    a("v_mov_b32 v6, 0")
    a("s_nop 0")
    a("v_cndmask_b32 v6, v6, 1, vcc")
    a("v_mul_u32_u24 v7, 5, v6")
    a("v_sub_u32 v5, v5, v7")
    a("v_lshlrev_b32 v5, 3, v5")
    a("v_bfe_u32 v7, v3, 2, 1")
    a("v_lshrrev_b32 v8, 3, v3")
    a("v_and_b32 v9, 3, v3")
    a("v_lshl_add_u32 v8, v8, 2, v9")
    a("v_mul_u32_u24 v9, 10, v7")
    a("v_add_u32 v9, v9, v8")
    a("v_cmp_gt_u32 vcc, 10, v8")
    a("v_mov_b32 v10, 20")
    a("s_nop 0")
    a("v_cndmask_b32 v9, v10, v9, vcc")
    a("v_lshrrev_b32 v10, 5, v5")
    a("v_mul_u32_u24 v10, 3072, v10")
    a("v_lshrrev_b32 v11, 3, v9")
    a("v_and_b32 v12, 3, v9")
    a("v_lshl_add_u32 v11, v11, 2, v12")
    a("v_lshl_add_u32 v10, v11, 8, v10")
    a("v_and_b32 v11, 31, v5")
    a("v_bfe_u32 v12, v9, 2, 1")
    a("v_lshl_add_u32 v11, v12, 5, v11")
    a("v_lshl_add_u32 v10, v11, 2, v10")
    a("s_mul_i32 s37, s36, 6144")
    a("v_add_u32 v10, s37, v10")
    a("v_cmp_ne_u32 vcc, s34, v6")
    a("v_cmp_lt_u32 s[40:41], 10, v8")
    a("s_or_b64 vcc, vcc, s[40:41]")
    a(f"v_mov_b32 v11, {OOB}")
    a("s_nop 0")
    a("v_cndmask_b32 v10, v10, v11, vcc")
    for rb in range(16):
        a(f"s_mov_b32 s37, {WS_KVP + rb*196608}")
        a(f"buffer_load_dwordx4 v[{16+8*rb}:{19+8*rb}], v10, s[24:27], s37 offen")
        a(f"buffer_load_dwordx4 v[{20+8*rb}:{23+8*rb}], v10, s[24:27], s37 offen offset:16")
    for rb in range(1, 16):
        a(f"s_waitcnt vmcnt({2*(15-rb)})")
        for i in range(8): a(f"v_add_f32 v{16+i}, v{16+i}, v{16+8*rb+i}")
    for i in range(4): a(f"v_cvt_pk_bf16_f32 v{12+i}, v{16+2*i}, v{17+2*i}")
    a("v_lshlrev_b32 v10, 4, v2")
    a("s_lshl_b32 s37, s31, 10")
    a(f"s_add_u32 s37, s37, {WS_KVF}")
    a("buffer_store_dwordx4 v[12:15], v10, s[24:27], s37 offen")
    a("s_branch K2_END2")
    a.lab("K2_MOE")
    a("s_sub_u32 s93, s2, 24")
    srd(a, 36, 12, 1966080)
    a("v_mul_u32_u24 v6, 205, v0")
    a("v_lshrrev_b32 v6, 14, v6")
    a("v_mul_u32_u24 v7, 80, v6")
    a("v_sub_u32 v7, v0, v7")
    a("s_mul_i32 s44, s93, 24")
    a("v_add_u32 v8, s44, v6")
    a("v_mul_u32_u24 v8, 1280, v8")
    a("v_lshl_add_u32 v8, v7, 4, v8")
    a("v_cmp_gt_u32 vcc, 3, v6")
    a(f"v_mov_b32 v9, {OOB}")
    a("s_nop 0")
    a("v_cndmask_b32 v8, v9, v8, vcc")
    DW=32
    a("v_mul_u32_u24 v10, 2731, v0")
    a("v_lshrrev_b32 v10, 16, v10")
    a("v_mul_u32_u24 v11, 24, v10")
    a("v_sub_u32 v11, v0, v11")
    a("v_mul_u32_u24 v10, 6144, v10")
    a("v_lshl_add_u32 v10, v11, 2, v10")
    a("s_mul_i32 s44, s93, 96")
    a("v_add_u32 v10, s44, v10")
    a("v_cmp_gt_u32 vcc, 48, v0")
    a("s_nop 1")
    a("v_cndmask_b32 v10, v9, v10, vcc")
    for ks in range(10):
        a(f"s_mov_b32 s45, {WS_GU + ks*12288}")
        a(f"buffer_load_dword v{12+ks}, v10, s[24:27], s45 offen")
    for i in range(8):
        a(f"s_mov_b32 s45, {i*3*1280}")
        a(f"buffer_load_dwordx4 v[{DW+4*i}:{DW+4*i+3}], v8, s[36:39], s45 offen")
    a("s_waitcnt vmcnt(8)")
    for ks in range(1, 10): a(f"v_add_f32 v12, v12, v{12+ks}")
    round_bf16(a, 12)
    a("v_lshlrev_b32 v11, 2, v0")
    a("v_cmp_gt_u32 vcc, 64, v0")
    a("s_and_saveexec_b64 s[56:57], vcc")
    a("ds_write_b32 v11, v12")
    a("s_waitcnt lgkmcnt(0)")
    a("ds_read_b32 v13, v11 offset:96")
    a("s_waitcnt lgkmcnt(0)")
    a(f"s_mov_b32 s60, 0x{LOG2E:x}")
    a("v_mul_f32 v17, s60, v12")
    a("v_exp_f32 v17, -v17")
    a("s_nop 0")
    a("v_add_f32 v17, 1.0, v17")
    a("v_rcp_f32 v17, v17")
    a("s_nop 0")
    a("v_mul_f32 v16, v12, v17")
    round_bf16(a, 16)
    a("v_mul_f32 v16, v16, v13")
    round_bf16(a, 16)
    a("ds_write_b32 v11, v16 offset:512")
    a("s_mov_b64 exec, s[56:57]")
    a("s_waitcnt lgkmcnt(0)")
    a("s_barrier")
    a("v_lshlrev_b32 v11, 2, v6")
    for i in range(8): a(f"ds_read_b32 v{12+i}, v11 offset:{512 + 12*i}")
    AG=72
    a("s_waitcnt vmcnt(0) lgkmcnt(0)")
    a("v_cmp_gt_u32 vcc, 3, v6")
    a("s_nop 1")
    for i in range(8): a(f"v_cndmask_b32 v{12+i}, 0, v{12+i}, vcc")
    for i in range(8):
        for d in range(4):
            a(f"v_lshlrev_b32 v24, 16, v{DW+4*i+d}")
            a(f"v_and_b32 v25, 0xffff0000, v{DW+4*i+d}")
            if i == 0:
                a(f"v_mul_f32 v{AG+2*d}, v24, v{12+i}")
                a(f"v_mul_f32 v{AG+2*d+1}, v25, v{12+i}")
            else:
                a(f"v_fmac_f32 v{AG+2*d}, v24, v{12+i}")
                a(f"v_fmac_f32 v{AG+2*d+1}, v25, v{12+i}")
    RED3=4096
    a("v_lshlrev_b32 v11, 5, v0")
    a(f"ds_write_b128 v11, v[{AG}:{AG+3}] offset:{RED3}")
    a(f"ds_write_b128 v11, v[{AG+4}:{AG+7}] offset:{RED3+16}")
    a("s_waitcnt lgkmcnt(0)")
    a("s_barrier")
    a("v_cmp_gt_u32 vcc, 160, v0")
    a("s_and_saveexec_b64 s[56:57], vcc")
    a("v_lshlrev_b32 v11, 4, v0")
    for q in range(3): a(f"ds_read_b128 v[{16+4*q}:{19+4*q}], v11 offset:{RED3 + 2560*q}")
    a("s_waitcnt lgkmcnt(0)")
    for i in range(4):
        a(f"v_add_f32 v{16+i}, v{16+i}, v{20+i}")
        a(f"v_add_f32 v{16+i}, v{16+i}, v{24+i}")
    a("s_mul_i32 s44, s93, 2560")
    a(f"s_add_u32 s44, s44, {WS_YP}")
    a("buffer_store_dwordx4 v[16:19], v11, s[24:27], s44 offen")
    a("s_mov_b64 exec, -1")
    a.lab("K2_END2")
    if STAMPS: a("s_waitcnt vmcnt(0)")
    st(); st.flush(2, 92)
    a.lab("K2_END")
    a("s_endpgm")
    return a.text()

K3_Y2 = 0
K3_PB = 4608
K3_LDS = 4*32*656 + K3_PB
def gen_k3():
    a = A()
    a.lab("k3_kernel")
    a("s_cmp_ge_u32 s2, 256")
    a("s_cbranch_scc1 K3_END")
    a("s_load_dwordx2 s[4:5], s[0:1], 0")
    a("s_load_dwordx2 s[6:7], s[0:1], 72")
    a("s_load_dwordx2 s[14:15], s[0:1], 88")
    a("v_lshrrev_b32 v1, 6, v0")
    a("v_and_b32 v2, 63, v0")
    a("v_lshlrev_b32 v3, 4, v2")
    a("v_readfirstlane_b32 s30, v1")
    a("s_and_b32 s31, s2, 7")
    a("s_lshr_b32 s32, s2, 3")
    a("s_and_b32 s33, s32, 3")
    a("s_lshr_b32 s32, s32, 2")
    a("s_lshl_b32 s31, s31, 3")
    a("s_add_u32 s34, s31, s32")
    a("s_waitcnt lgkmcnt(0)")
    a(f"s_add_u32 s80, s14, {WS_FKEY}")
    a(f"s_addc_u32 s81, s15, 0")
    a(f"s_load_dword s46, s[80:81], 0")
    srd(a, 24, 14, WS_BYTES)
    srd(a, 16, 4, 2621440)
    srd(a, 20, 6, 2621440)
    st = Stamper(a); st()
    ES=[8,9,10,11,12]; EU=[13,14,15,16,17]; EO=[18,19,20,21,22]
    XV=24; SV=34
    a("s_lshl_b32 s35, s34, 5")
    a("s_mul_i32 s36, s33, 320")
    a("s_lshl_b32 s37, s34, 4")
    a("s_lshl_b32 s38, s30, 2")
    a("s_add_u32 s37, s37, s38")
    a("s_mul_i32 s37, s37, 5120")
    a("s_mul_i32 s38, s30, 24576")
    a(f"s_add_u32 s38, s38, {WS_KVF}")
    a("s_mul_i32 s39, s30, 200")
    a("s_mul_i32 s40, s33, 50")
    a("s_add_u32 s39, s39, s40")
    a("s_lshl_b32 s39, s39, 10")
    a(f"s_add_u32 s39, s39, {WS_WOF}")
    def ld(base, sbase, off):
        hi, lo = off // 4096 * 4096, off % 4096
        a(f"s_add_u32 s41, s{sbase}, {hi}")
        a(f"buffer_load_dwordx4 a[{base}:{base+3}], v3, s[24:27], s41 offen offset:{lo}")
    def ldP(pl):
        for t in range(5): ld(20*pl+4*t, 37, (pl*5+t)*1024)
        for fi in range(6): ld(80+24*pl+4*fi, 38, (pl*6+fi)*1024)
    ldP(0); ldP(1)
    a(f"s_mov_b32 s42, {WS_STATS}")
    for q in range(5):
        a(f"v_add_u32 v4, {256*q}, v0")
        a(f"v_mul_u32_u24 v{ES[q]}, 1639, v4")
        a(f"v_lshrrev_b32 v{ES[q]}, 16, v{ES[q]}")
        a(f"v_mul_u32_u24 v5, 40, v{ES[q]}")
        a(f"v_sub_u32 v{EU[q]}, v4, v5")
        a(f"v_add_u32 v{ES[q]}, s35, v{ES[q]}")
        a(f"v_mul_u32_u24 v6, 1280, v{ES[q]}")
        a(f"v_lshl_add_u32 v6, v{EU[q]}, 3, v6")
        a(f"v_add_u32 v{EO[q]}, s36, v6")
        a(f"buffer_load_dwordx2 v[{XV+2*q}:{XV+2*q+1}], v{EO[q]}, s[16:19], 0 offen")
        a(f"v_lshlrev_b32 v5, 3, v{ES[q]}")
        a(f"buffer_load_dwordx2 v[{SV+2*q}:{SV+2*q+1}], v5, s[24:27], s42 offen")
    ldP(2); ldP(3)
    def woreg(wi):
        if wi < 20: return 176+4*wi
        j = wi - 20; pl, r = j // 11, j % 11
        return 20*pl + 4*r if r < 5 else 80 + 24*pl + 4*(r-5)
    def ldw(wi):
        t2, k = wi // 5, wi % 5
        ld(woreg(wi), 39, (k*10+t2)*1024)
    for wi in range(9): ldw(wi)
    a("s_waitcnt lgkmcnt(0)")
    unsort_key(a, 46, 47, 48)
    a("s_lshr_b32 s49, s47, 5")
    D=[[44, 60], [76, 92]]
    OF=108; ACC=148; TT=228; YV=232
    def p1_mfma(pl):
        Da, Db = D[pl & 1]
        for (Dx, f0, t0) in ((Da, 0, 0), (Db, 3, 2)):
            for i in range(3):
                A_ = 80+24*pl+4*(f0+i); B_ = 20*pl+4*(t0+i)
                c = "0" if i == 0 else f"v[{Dx}:{Dx+15}]"
                a(f"v_mfma_f32_32x32x16_bf16 v[{Dx}:{Dx+15}], a[{A_}:{A_+3}], a[{B_}:{B_+3}], {c}")
    def p1_valu(pl):
        for hh, Dx in enumerate(D[pl & 1]):
            hl = 2*pl + hh
            a(f"v_add_f32 v{TT}, 0x358637bd, v{Dx+10}")
            a(f"v_rcp_f32 v{TT}, v{TT}")
            a("s_nop 0")
            for i in range(10): a(f"v_mul_f32 v{Dx+i}, v{Dx+i}, v{TT}")
            for i in range(5): a(f"v_cvt_pk_bf16_f32 v{OF+5*hl+i}, v{Dx+2*i}, v{Dx+2*i+1}")
    st()
    a("s_waitcnt vmcnt(52)")
    p1_mfma(0)
    for wi in range(9, 20): ldw(wi)
    a("s_waitcnt vmcnt(52)")
    p1_mfma(1)
    for wi in range(20, 31): ldw(wi)
    p1_valu(0)
    a("s_waitcnt vmcnt(42)")
    p1_mfma(2)
    for wi in range(31, 42): ldw(wi)
    p1_valu(1)
    for q in range(5):
        a(f"v_lshlrev_b32 v228, 16, v{XV+2*q}")
        a(f"v_and_b32 v229, 0xffff0000, v{XV+2*q}")
        a(f"v_lshlrev_b32 v230, 16, v{XV+2*q+1}")
        a(f"v_and_b32 v231, 0xffff0000, v{XV+2*q+1}")
        for i in range(4): a(f"v_sub_f32 v{228+i}, v{228+i}, v{SV+2*q}")
        a(f"v_cvt_pk_bf16_f32 v232, v228, v229")
        a(f"v_cvt_pk_bf16_f32 v233, v230, v231")
        a(f"v_lshlrev_b32 v228, 16, v232")
        a(f"v_and_b32 v229, 0xffff0000, v232")
        a(f"v_lshlrev_b32 v230, 16, v233")
        a(f"v_and_b32 v231, 0xffff0000, v233")
        for i in range(4): a(f"v_mul_f32 v{228+i}, v{228+i}, v{SV+2*q+1}")
        a(f"v_cvt_pk_bf16_f32 v{SV+2*q}, v228, v229")
        a(f"v_cvt_pk_bf16_f32 v{SV+2*q+1}, v230, v231")
    a("s_waitcnt vmcnt(42)")
    p1_mfma(3)
    for wi in range(42, 50): ldw(wi)
    p1_valu(2)
    a("s_nop 7")
    p1_valu(3)
    a("s_nop 1")
    st()
    a("s_cmp_lg_u32 s49, s34")
    a("s_cbranch_scc1 K3_P2N")
    a("v_mul_u32_u24 v4, 1639, v0")
    a("v_lshrrev_b32 v4, 16, v4")
    a("v_mul_u32_u24 v5, 40, v4")
    a("v_sub_u32 v5, v0, v5")
    a("v_mul_u32_u24 v6, 2560, v4")
    a("v_lshl_add_u32 v6, v5, 4, v6")
    a("s_mul_i32 s50, s33, 640")
    a("v_add_u32 v6, s50, v6")
    a(f"v_mov_b32 v7, {OOB}")
    a("v_cmp_gt_u32 vcc, 6, v4")
    a("s_nop 1")
    a("v_cndmask_b32 v6, v7, v6, vcc")
    a("v_cmp_gt_u32 vcc, 4, v4")
    a("s_nop 1")
    a("v_cndmask_b32 v7, v7, v6, vcc")
    for i in range(11):
        a(f"s_mov_b32 s50, {WS_YP + i*6*2560}")
        a(f"buffer_load_dwordx4 v[{44+4*i}:{47+4*i}], v{6 if i < 10 else 7}, s[24:27], s50 offen")
    for t2 in range(10):
        a(f"s_waitcnt vmcnt({45-5*t2+11})")
        for k in range(5):
            A_ = woreg(5*t2+k)
            c = "0" if t2 == 0 else f"v[{ACC+16*k}:{ACC+16*k+15}]"
            a(f"v_mfma_f32_32x32x16_bf16 v[{ACC+16*k}:{ACC+16*k+15}], a[{A_}:{A_+3}], v[{OF+4*t2}:{OF+4*t2+3}], {c}")
    a("s_waitcnt vmcnt(0)")
    for i in range(1, 11):
        for e in range(4): a(f"v_add_f32 v{44+e}, v{44+e}, v{44+4*i+e}")
    a("v_lshlrev_b32 v4, 4, v0")
    a("v_cmp_gt_u32 vcc, 240, v0")
    a("s_and_saveexec_b64 s[56:57], vcc")
    a(f"ds_write_b128 v4, v[44:47] offset:{K3_Y2}")
    a("s_mov_b64 exec, s[56:57]")
    a("s_branch K3_P2E")
    a.lab("K3_P2N")
    for t2 in range(10):
        a(f"s_waitcnt vmcnt({45-5*t2})")
        for k in range(5):
            A_ = woreg(5*t2+k)
            c = "0" if t2 == 0 else f"v[{ACC+16*k}:{ACC+16*k+15}]"
            a(f"v_mfma_f32_32x32x16_bf16 v[{ACC+16*k}:{ACC+16*k+15}], a[{A_}:{A_+3}], v[{OF+4*t2}:{OF+4*t2+3}], {c}")
    a.lab("K3_P2E")
    st()
    a("v_and_b32 v4, 31, v2")
    a("v_mul_u32_u24 v4, 656, v4")
    a("v_lshrrev_b32 v5, 5, v2")
    a("v_lshl_add_u32 v4, v5, 4, v4")
    a("s_mul_i32 s50, s30, 20992")
    a(f"s_add_u32 s50, s50, {K3_PB}")
    a("v_add_u32 v4, s50, v4")
    a("s_nop 7")
    for k in range(5):
        for g in range(4):
            a(f"ds_write_b128 v4, v[{ACC+16*k+4*g}:{ACC+16*k+4*g+3}] offset:{(8*k+2*g)*16}")
    a("s_waitcnt lgkmcnt(0)")
    a("s_barrier")
    st()
    for q in range(5):
        a(f"v_subrev_u32 v4, s35, v{ES[q]}")
        a(f"v_mul_u32_u24 v4, 656, v4")
        a(f"v_lshl_add_u32 v4, v{EU[q]}, 4, v4")
        a(f"v_add_u32 v4, {K3_PB}, v4")
        for w in range(4):
            a(f"ds_read_b128 v[{44+16*q+4*w}:{47+16*q+4*w}], v4 offset:{w*20992}")
    a("s_cmp_lg_u32 s49, s34")
    a("s_cbranch_scc1 K3_NOY")
    a(f"s_mov_b32 s60, 0x{LOG2E:x}")
    a("v_mov_b32 v232, s48")
    a("v_mul_f32 v232, s60, v232")
    a("v_exp_f32 v232, -v232")
    a("s_nop 0")
    a("v_add_f32 v232, 1.0, v232")
    a("v_rcp_f32 v232, v232")
    a("s_nop 0")
    round_bf16(a, 232)
    for q in range(5):
        a(f"v_lshlrev_b32 v5, 4, v{EU[q]}")
        for jg in range(6): a(f"ds_read_b128 v[{128+4*jg}:{131+4*jg}], v5 offset:{K3_Y2 + 640*jg}")
        a("s_waitcnt lgkmcnt(0)")
        for jg in range(1, 6):
            for e in range(4): a(f"v_add_f32 v{128+e}, v{128+e}, v{128+4*jg+e}")
        a(f"v_cmp_eq_u32 vcc, s47, v{ES[q]}")
        a(f"v_lshlrev_b32 v228, 16, v{SV+2*q}")
        a(f"v_and_b32 v229, 0xffff0000, v{SV+2*q}")
        a(f"v_lshlrev_b32 v230, 16, v{SV+2*q+1}")
        a(f"v_and_b32 v231, 0xffff0000, v{SV+2*q+1}")
        for e in range(4):
            round_bf16(a, 128+e)
            a(f"v_mul_f32 v{128+e}, v{128+e}, v232")
            round_bf16(a, 128+e)
            a(f"v_cndmask_b32 v{128+e}, 0, v{128+e}, vcc")
            a(f"v_add_f32 v{228+e}, v{228+e}, v{128+e}")
        a(f"v_cvt_pk_bf16_f32 v{SV+2*q}, v228, v229")
        a(f"v_cvt_pk_bf16_f32 v{SV+2*q+1}, v230, v231")
    a.lab("K3_NOY")
    a("s_waitcnt lgkmcnt(0)")
    for q in range(5):
        b = 44+16*q
        for i in range(4):
            a(f"v_add_f32 v{b+i}, v{b+i}, v{b+4+i}")
            a(f"v_add_f32 v{b+8+i}, v{b+8+i}, v{b+12+i}")
            a(f"v_add_f32 v{b+i}, v{b+i}, v{b+8+i}")
        a(f"v_cvt_pk_bf16_f32 v232, v{b}, v{b+1}")
        a(f"v_cvt_pk_bf16_f32 v233, v{b+2}, v{b+3}")
        a(f"v_lshlrev_b32 v{b}, 16, v232")
        a(f"v_and_b32 v{b+1}, 0xffff0000, v232")
        a(f"v_lshlrev_b32 v{b+2}, 16, v233")
        a(f"v_and_b32 v{b+3}, 0xffff0000, v233")
        a(f"v_lshlrev_b32 v228, 16, v{XV+2*q}")
        a(f"v_and_b32 v229, 0xffff0000, v{XV+2*q}")
        a(f"v_lshlrev_b32 v230, 16, v{XV+2*q+1}")
        a(f"v_and_b32 v231, 0xffff0000, v{XV+2*q+1}")
        for i in range(4): a(f"v_add_f32 v{b+i}, v{b+i}, v{228+i}")
        a(f"v_cvt_pk_bf16_f32 v232, v{b}, v{b+1}")
        a(f"v_cvt_pk_bf16_f32 v233, v{b+2}, v{b+3}")
        a(f"v_lshlrev_b32 v{b}, 16, v232")
        a(f"v_and_b32 v{b+1}, 0xffff0000, v232")
        a(f"v_lshlrev_b32 v{b+2}, 16, v233")
        a(f"v_and_b32 v{b+3}, 0xffff0000, v233")
        a(f"v_lshlrev_b32 v228, 16, v{SV+2*q}")
        a(f"v_and_b32 v229, 0xffff0000, v{SV+2*q}")
        a(f"v_lshlrev_b32 v230, 16, v{SV+2*q+1}")
        a(f"v_and_b32 v231, 0xffff0000, v{SV+2*q+1}")
        for i in range(4): a(f"v_add_f32 v{b+i}, v{b+i}, v{228+i}")
        a(f"v_cvt_pk_bf16_f32 v{b+4}, v{b}, v{b+1}")
        a(f"v_cvt_pk_bf16_f32 v{b+5}, v{b+2}, v{b+3}")
        a(f"buffer_store_dwordx2 v[{b+4}:{b+5}], v{EO[q]}, s[20:23], 0 offen")
    if STAMPS: a("s_waitcnt vmcnt(0)")
    st(); st.flush(3, 30)
    a.lab("K3_END")
    a("s_endpgm")
    return a.text()

def build(kernels):
    s = "; generated by work/gen2.py\n"
    s += header([(k[0], k[3], k[4], k[5]) for k in kernels])
    s += '.amdgcn_target "amdgcn-amd-amdhsa--gfx950"\n.text\n'
    for k in kernels:
        s += f".globl {k[0]}\n.p2align 8\n.type {k[0]},@function\n" + k[1]
    s += '.section .rodata,"a"\n'
    for k in kernels:
        s += ".p2align 6\n" + kdesc(k[0], k[2], accum=k[6])
    return s

if __name__ == "__main__":
    if "--stamps" in sys.argv:
        STAMPS = True; sys.argv.remove("--stamps")
    ks = [("k0_kernel", gen_k0(), 256, 256, 256, K0_LDS, None),
          ("k1_kernel", gen_k1(), 256 if STAMPS else 200, 256, 512, K1_LDS, None),
          ("k2_kernel", gen_k2(), 256 if STAMPS else 148, 88, 256, K2_LDS, None),
          ("k3_kernel", gen_k3(), 512, 256, 256, K3_LDS, 256)]
    out = sys.argv[1] if len(sys.argv) > 1 else "b.s"
    open(out, "w").write(build(ks))
```

```python
import sys
from gen import A, kdesc, srd, round_bf16, LOG2E, softmax_pm, unsort_key, header
import gen

WS_PHIQ  = 0x000000
WS_KVP   = 0x500000
WS_STATS = 0x800000
WS_KEYS  = 0x804000
WS_FKEY  = 0x805000
WS_KVF   = 0x810000
WS_WOF   = 0x830000
WS_YP    = 0x900000
WS_GU    = 0x940000
WS_XF    = 0xA00000
WS_WF    = 0xD00000
WS_DBG   = 0x1000000
WS_BYTES = 0x1400000
OOB = 0x7f000000
STAMPS = False

class Stamper:
    def __init__(self, a): self.a = a; self.n = 0
    def __call__(self):
        if not STAMPS: return
        a = self.a
        a(f"s_memrealtime s[82:83]")
        a("s_waitcnt lgkmcnt(0)")
        a(f"s_mov_b32 s{84+self.n}, s82")
        self.n += 1
    def cyc(self):
        if not STAMPS: return
        a = self.a
        a(f"s_memtime s[82:83]")
        a("s_waitcnt lgkmcnt(0)")
        a(f"s_mov_b32 s{84+self.n}, s82")
        self.n += 1
    def flush(self, kidx, wave_sgpr, srd=24):
        if not STAMPS: return
        a = self.a
        a(f"s_lshl_b32 s82, s2, 3")
        a(f"s_add_u32 s82, s82, s{wave_sgpr}")
        a(f"s_lshl_b32 s82, s82, 6")
        a(f"s_add_u32 s82, s82, {WS_DBG + kidx*0x80000}")
        a(f"v_mov_b32 v250, 0")
        for i in range(self.n):
            a(f"v_mov_b32 v251, s{84+i}")
            a(f"buffer_store_dword v251, v250, s[{srd}:{srd+3}], s82 offen offset:{4*i}")

def sum_stride8(a, v, t1, t2):
    a(f"v_add_f32_dpp v{v}, v{v}, v{v} row_ror:8 row_mask:0xf bank_mask:0xf")
    a(f"v_mov_b32 v{t1}, v{v}")
    a(f"v_mov_b32 v{t2}, v{v}")
    a("s_nop 1")
    a(f"v_permlane16_swap_b32 v{t1}, v{t2}")
    a("s_nop 1")
    a(f"v_add_f32 v{v}, v{t1}, v{t2}")
    a(f"v_mov_b32 v{t1}, v{v}")
    a(f"v_mov_b32 v{t2}, v{v}")
    a("s_nop 1")
    a(f"v_permlane32_swap_b32 v{t1}, v{t2}")
    a("s_nop 1")
    a(f"v_add_f32 v{v}, v{t1}, v{t2}")

K0_LDS = 4096
def gen_k0():
    a = A()
    a.lab("k0_kernel")
    a("s_cmp_ge_u32 s2, 256")
    a("s_cbranch_scc1 K0_END")
    a("s_load_dwordx4 s[4:7], s[0:1], 0")
    a("s_load_dwordx4 s[8:11], s[0:1], 16")
    a("s_load_dwordx2 s[12:13], s[0:1], 40")
    a("s_load_dwordx2 s[14:15], s[0:1], 88")
    a("v_and_b32 v1, 63, v0")
    a("v_lshrrev_b32 v4, 6, v0")
    a("v_and_b32 v2, 31, v1")
    a("v_lshrrev_b32 v3, 5, v1")
    a("v_readfirstlane_b32 s30, v4")
    a("v_and_b32 v4, 7, v0")
    a("v_lshrrev_b32 v5, 3, v0")
    a("s_lshl_b32 s31, s2, 3")
    a("v_add_u32 v6, s31, v4")
    a("v_mul_u32_u24 v7, 1280, v6")
    a("v_lshl_add_u32 v7, v5, 4, v7")
    a("v_cmp_gt_u32 vcc, 16, v5")
    a(f"v_mov_b32 v80, {OOB}")
    a("v_lshlrev_b32 v81, 4, v5")
    a("v_cndmask_b32 v82, v80, v7, vcc")
    a("s_waitcnt lgkmcnt(0)")
    srd(a, 16, 4, 2621440)
    srd(a, 20, 6, 2457600)
    srd(a, 24, 14, WS_BYTES)
    srd(a, 36, 8, 25600)
    srd(a, 40, 10, 819200)
    srd(a, 44, 12, 1280)
    st = Stamper(a); st()
    a("buffer_load_dwordx4 v[8:11], v7, s[16:19], 0 offen")
    a("buffer_load_dwordx4 v[12:15], v7, s[16:19], 0 offen offset:512")
    a("buffer_load_dwordx4 v[16:19], v82, s[16:19], 0 offen offset:1024")
    a("buffer_load_dwordx4 v[20:23], v81, s[44:47], 0 offen")
    a("buffer_load_dwordx4 v[24:27], v81, s[44:47], 0 offen offset:512")
    a("buffer_load_dwordx4 v[28:31], v81, s[44:47], 0 offen offset:1024")
    def job_decode(i, sb):
        a(f"s_add_u32 s32, s2, {256*i}")
        a(f"s_mul_i32 s33, s32, 205")
        a(f"s_lshr_b32 s33, s33, 12")
        a(f"s_mul_i32 s34, s33, 20")
        a(f"s_sub_u32 s{sb}, s32, s34")
        a(f"s_lshl_b32 s33, s33, 2")
        a(f"s_add_u32 s33, s33, s30")
        a(f"s_lshr_b32 s{sb+1}, s33, 5")
        a(f"s_and_b32 s{sb+2}, s33, 31")
    def job_load(sb, VA, VP):
        a(f"s_mul_i32 s32, s{sb}, {32*3840}")
        a(f"s_mul_i32 s33, s{sb+1}, 1280")
        a(f"s_add_u32 s32, s32, s33")
        a(f"s_mul_i32 s33, s{sb+2}, 40")
        a(f"s_add_u32 s32, s32, s33")
        a(f"buffer_load_dwordx4 v[{VA}:{VA+3}], v83, s[20:23], s32 offen")
        a(f"buffer_load_dwordx2 v[{VA+4}:{VA+5}], v84, s[20:23], s32 offen offset:32")
        a(f"s_mul_i32 s33, s{sb+2}, 800")
        for j in range(8):
            a(f"buffer_load_ushort v{VP+j}, v85, s[36:39], s33 offen offset:{40*j}")
        for j in range(4):
            a(f"buffer_load_ushort v{VP+8+j}, v86, s[36:39], s33 offen offset:{640+40*j}")
    a("v_mul_u32_u24 v83, 3840, v2")
    a("v_cmp_eq_u32 vcc, 0, v3")
    a("s_nop 0")
    a("v_cndmask_b32 v84, v80, v83, vcc")
    a("v_lshl_add_u32 v83, v3, 4, v83")
    a("v_mul_u32_u24 v85, 320, v3")
    a("v_lshl_add_u32 v85, v2, 1, v85")
    a("v_lshlrev_b32 v86, 1, v2")
    a("v_cmp_gt_u32 s[32:33], 20, v2")
    a("s_and_b64 s[34:35], s[32:33], vcc")
    a("v_cndmask_b32 v85, v80, v85, s[32:33]")
    a("v_cndmask_b32 v86, v80, v86, s[34:35]")
    job_decode(0, 48); job_load(48, 32, 40)
    a("s_cmp_ge_u32 s2, 224")
    a("s_cbranch_scc1 K0_NOJ1L")
    job_decode(1, 56); job_load(56, 52, 60)
    a.lab("K0_NOJ1L")
    a("s_lshl_b32 s60, s2, 2")
    a("s_add_u32 s60, s60, s30")
    a("s_cmp_ge_u32 s60, 800")
    a("s_cbranch_scc1 K0_NOWOL")
    a("s_mul_i32 s32, s60, 41")
    a("s_lshr_b32 s32, s32, 13")
    a("s_mul_i32 s33, s32, 200")
    a("s_sub_u32 s33, s60, s33")
    a("s_mul_i32 s34, s33, 205")
    a("s_lshr_b32 s34, s34, 11")
    a("s_mul_i32 s35, s34, 10")
    a("s_sub_u32 s35, s33, s35")
    a("v_mul_u32_u24 v87, 12800, v3")
    a("s_lshl_b32 s34, s34, 6")
    a("v_lshl_add_u32 v87, v2, 1, v87")
    a("v_add_u32 v87, s34, v87")
    for j in range(8):
        a(f"s_lshl_b32 s61, s35, 3")
        a(f"s_add_u32 s61, s61, {j}")
        a(f"s_mul_i32 s62, s61, 205")
        a(f"s_lshr_b32 s62, s62, 11")
        a(f"s_mul_i32 s63, s62, 10")
        a(f"s_sub_u32 s63, s61, s63")
        a(f"s_lshl_b32 s64, s32, 3")
        a(f"s_add_u32 s64, s64, s62")
        a(f"s_mul_i32 s64, s64, 20")
        a(f"s_add_u32 s64, s64, s63")
        a(f"s_mul_i32 s64, s64, 1280")
        a(f"buffer_load_ushort v{72+j}, v87, s[40:43], s64 offen")
    a.lab("K0_NOWOL")
    st()
    a("s_waitcnt vmcnt(14)")
    XF = 88
    for i in range(12):
        a(f"v_lshlrev_b32 v{XF+2*i}, 16, v{8+i}")
        a(f"v_and_b32 v{XF+2*i+1}, 0xffff0000, v{8+i}")
        a(f"v_lshlrev_b32 v{112+2*i}, 16, v{20+i}")
        a(f"v_and_b32 v{113+2*i}, 0xffff0000, v{20+i}")
    S, Q, RW, SW = 136, 137, 138, 139
    a(f"v_add_f32 v{S}, v{XF}, v{XF+1}")
    a(f"v_mul_f32 v{Q}, v{XF}, v{XF}")
    a(f"v_mul_f32 v{RW}, v{XF}, v112")
    a(f"v_add_f32 v{SW}, v112, v113")
    a(f"v_fmac_f32 v{Q}, v{XF+1}, v{XF+1}")
    a(f"v_fmac_f32 v{RW}, v{XF+1}, v113")
    for i in range(2, 24):
        a(f"v_add_f32 v{S}, v{S}, v{XF+i}")
        a(f"v_fmac_f32 v{Q}, v{XF+i}, v{XF+i}")
        a(f"v_fmac_f32 v{RW}, v{XF+i}, v{112+i}")
        a(f"v_add_f32 v{SW}, v{SW}, v{112+i}")
    for v in (S, Q, RW, SW): sum_stride8(a, v, 140, 141)
    a("v_lshlrev_b32 v140, 4, v4")
    a("s_lshl_b32 s32, s30, 7")
    a("v_add_u32 v141, s32, v140")
    a(f"ds_write_b128 v141, v[{S}:{S+3}]")
    a("s_waitcnt lgkmcnt(0)")
    a("s_barrier")
    for wv in range(4): a(f"ds_read_b128 v[{144+4*wv}:{147+4*wv}], v140 offset:{128*wv}")
    a("s_waitcnt lgkmcnt(0)")
    for i in range(4):
        a(f"v_add_f32 v{144+i}, v{144+i}, v{148+i}")
        a(f"v_add_f32 v{152+i}, v{152+i}, v{156+i}")
        a(f"v_add_f32 v{144+i}, v{144+i}, v{152+i}")
    MB, RSTD = 160, 161
    a(f"s_mov_b32 s32, 0x3acccccd")
    a(f"v_mul_f32 v{MB}, s32, v144")
    a(f"v_mul_f32 v162, s32, v145")
    a(f"v_fma_f32 v162, -v{MB}, v{MB}, v162")
    a(f"v_max_f32 v162, 0, v162")
    round_bf16(a, MB); round_bf16(a, 162)
    a(f"v_add_f32 v162, 0x3727c5ac, v162")
    round_bf16(a, 162)
    a(f"v_sqrt_f32 v162, v162")
    a("s_nop 0")
    round_bf16(a, 162)
    a(f"v_rcp_f32 v{RSTD}, v162")
    a("s_nop 0")
    a(f"v_fma_f32 v163, -v{MB}, v147, v146")
    a(f"v_mul_f32 v163, v163, v{RSTD}")
    for i in range(24): a(f"v_sub_f32 v{XF+i}, v{XF+i}, v{MB}")
    for i in range(12):
        a(f"v_cvt_pk_bf16_f32 v{8+i}, v{XF+2*i}, v{XF+2*i+1}")
        a(f"v_lshlrev_b32 v{XF+2*i}, 16, v{8+i}")
        a(f"v_and_b32 v{XF+2*i+1}, 0xffff0000, v{8+i}")
        a(f"v_mul_f32 v{XF+2*i}, v{XF+2*i}, v{RSTD}")
        a(f"v_mul_f32 v{XF+2*i+1}, v{XF+2*i+1}, v{RSTD}")
        a(f"v_cvt_pk_bf16_f32 v{8+i}, v{XF+2*i}, v{XF+2*i+1}")
    a("v_lshrrev_b32 v164, 5, v6")
    a("v_mul_u32_u24 v164, 40960, v164")
    a("v_and_b32 v165, 31, v6")
    a("v_lshl_add_u32 v164, v165, 4, v164")
    a("v_lshl_add_u32 v164, v5, 9, v164")
    a("v_cmp_gt_u32 vcc, 16, v5")
    a(f"s_mov_b32 s32, {WS_XF}")
    a("v_cndmask_b32 v165, v80, v164, vcc")
    a("buffer_store_dwordx4 v[8:11], v164, s[24:27], s32 offen")
    a(f"s_mov_b32 s33, {WS_XF + 16384}")
    a("buffer_store_dwordx4 v[12:15], v164, s[24:27], s33 offen")
    a(f"s_mov_b32 s33, {WS_XF + 32768}")
    a("buffer_store_dwordx4 v[16:19], v165, s[24:27], s33 offen")
    a("s_cmp_lg_u32 s30, 0")
    a("s_cbranch_scc1 K0_NOKEY")
    a("v_cvt_pk_bf16_f32 v166, v163, v163")
    a("v_and_b32 v166, 0xffff, v166")
    a("v_and_b32 v167, 0x8000, v166")
    a("v_cmp_eq_u32 vcc, 0, v167")
    a("v_mov_b32 v167, 0xffff")
    a("v_mov_b32 v168, 0x8000")
    a("v_cndmask_b32 v167, v167, v168, vcc")
    a("v_xor_b32 v166, v166, v167")
    a("v_lshlrev_b32 v166, 16, v166")
    a("v_sub_u32 v167, 0xffff, v6")
    a("v_or_b32 v166, v166, v167")
    a("s_nop 1")
    a("v_max_u32_dpp v166, v166, v166 quad_perm:[1,0,3,2] row_mask:0xf bank_mask:0xf")
    a("s_nop 1")
    a("v_max_u32_dpp v166, v166, v166 quad_perm:[2,3,0,1] row_mask:0xf bank_mask:0xf")
    a("s_nop 1")
    a("v_max_u32_dpp v166, v166, v166 row_ror:4 row_mask:0xf bank_mask:0xf")
    a("v_lshlrev_b32 v167, 3, v6")
    a(f"v_mov_b32 v168, v{MB}"); a(f"v_mov_b32 v169, v{RSTD}")
    a("v_cmp_gt_u32 vcc, 8, v1")
    a("s_and_saveexec_b64 s[32:33], vcc")
    a(f"s_mov_b32 s34, {WS_STATS}")
    a("buffer_store_dwordx2 v[168:169], v167, s[24:27], s34 offen")
    a("v_cmp_eq_u32 vcc, 0, v1")
    a("s_and_b64 exec, exec, vcc")
    a("s_lshl_b32 s34, s2, 2")
    a(f"s_add_u32 s34, s34, {WS_KEYS}")
    a("v_mov_b32 v167, 0")
    a("buffer_store_dword v166, v167, s[24:27], s34 offen")
    a("s_mov_b64 exec, s[32:33]")
    a.lab("K0_NOKEY")
    st()
    def job_compute(sb, VA, VP, lab):
        a("s_waitcnt vmcnt(0)")
        a(f"v_mov_b32 v{VA+6}, 0"); a(f"v_mov_b32 v{VA+7}, 0")
        B0 = 170; B1 = 174
        a(f"s_cmp_eq_u32 s{sb+1}, 2")
        a(f"s_cbranch_scc1 {lab}_ID")
        for i in range(4): a(f"v_lshl_or_b32 v{B0+i}, v{VP+2*i+1}, 16, v{VP+2*i}")
        for i in range(2): a(f"v_lshl_or_b32 v{B1+i}, v{VP+8+2*i+1}, 16, v{VP+8+2*i}")
        a(f"s_branch {lab}_B")
        a.lab(f"{lab}_ID")
        a(f"v_lshlrev_b32 v178, 3, v3")
        a(f"v_sub_u32 v178, v2, v178")
        a(f"v_mov_b32 v179, 0x3f80")
        a(f"v_mov_b32 v180, 0x3f800000")
        for i in range(4):
            a(f"v_cmp_eq_u32 vcc, {2*i}, v178")
            a(f"v_cmp_eq_u32 s[32:33], {2*i+1}, v178")
            a("s_nop 0")
            a(f"v_cndmask_b32 v{B0+i}, 0, v179, vcc")
            a(f"v_cndmask_b32 v181, 0, v180, s[32:33]")
            a(f"v_or_b32 v{B0+i}, v{B0+i}, v181")
        a(f"v_lshl_add_u32 v178, v3, 6, v2")
        for i in range(2):
            a(f"v_cmp_eq_u32 vcc, {16+2*i}, v178")
            a(f"v_cmp_eq_u32 s[32:33], {17+2*i}, v178")
            a("s_nop 0")
            a(f"v_cndmask_b32 v{B1+i}, 0, v179, vcc")
            a(f"v_cndmask_b32 v181, 0, v180, s[32:33]")
            a(f"v_or_b32 v{B1+i}, v{B1+i}, v181")
        a.lab(f"{lab}_B")
        a(f"v_mov_b32 v{B1+2}, 0"); a(f"v_mov_b32 v{B1+3}, 0")
        D = 184
        a("s_nop 1")
        a(f"v_mfma_f32_32x32x16_bf16 v[{D}:{D+15}], v[{VA}:{VA+3}], v[{B0}:{B0+3}], 0")
        a(f"v_mfma_f32_32x32x16_bf16 v[{D}:{D+15}], v[{VA+4}:{VA+7}], v[{B1}:{B1+3}], v[{D}:{D+15}]")
        a(f"s_cmp_eq_u32 s{sb+1}, 1")
        a(f"s_cselect_b32 s32, 32, 0")
        a(f"v_add_u32 v178, s32, v2")
        a(f"v_mov_b32 v179, 20")
        a(f"s_cmp_eq_u32 s{sb+1}, 2")
        a(f"s_cbranch_scc0 {lab}_O")
        a(f"v_cmp_gt_u32 vcc, 12, v2")
        a(f"v_add_u32 v178, 20, v2")
        a(f"v_add_u32 v179, 40, v2")
        a(f"v_cndmask_b32 v178, v179, v178, vcc")
        a(f"v_mov_b32 v179, 24")
        a.lab(f"{lab}_O")
        a(f"s_and_b32 s32, s{sb+2}, 1")
        a(f"s_lshl_b32 s32, s32, 2")
        a(f"v_lshrrev_b32 v180, 4, v178")
        a(f"v_lshlrev_b32 v180, 10, v180")
        a(f"v_bfe_u32 v181, v178, 2, 2")
        a(f"v_lshlrev_b32 v181, 3, v181")
        a(f"v_and_b32 v182, 3, v178")
        a(f"v_add3_u32 v181, v181, v182, s32")
        a(f"v_lshl_add_u32 v181, v3, 5, v181")
        a(f"v_lshl_add_u32 v180, v181, 4, v180")
        a(f"v_cmp_lt_u32 vcc, v2, v179")
        a("s_nop 0")
        a(f"v_cndmask_b32 v180, v80, v180, vcc")
        a(f"s_lshr_b32 s32, s{sb+2}, 1")
        a(f"s_mul_i32 s32, s32, 40")
        a(f"s_lshl_b32 s33, s{sb}, 1")
        a(f"s_add_u32 s32, s32, s33")
        a(f"s_lshl_b32 s32, s32, 12")
        a(f"s_add_u32 s32, s32, {WS_WF}")
        a(f"s_add_u32 s33, s32, 4096")
        a("s_nop 7")
        for i in range(8): a(f"v_cvt_pk_bf16_f32 v{200+i}, v{D+2*i}, v{D+2*i+1}")
        a("s_nop 1")
        a("v_permlane32_swap_b32 v200, v202")
        a("v_permlane32_swap_b32 v201, v203")
        a("v_permlane32_swap_b32 v204, v206")
        a("v_permlane32_swap_b32 v205, v207")
        a("s_nop 1")
        a(f"buffer_store_dwordx4 v[200:203], v180, s[24:27], s32 offen")
        a(f"buffer_store_dwordx4 v[204:207], v180, s[24:27], s33 offen")
        a("s_nop 1")
    job_compute(48, 32, 40, "K0_J0")
    a("s_cmp_ge_u32 s2, 224")
    a("s_cbranch_scc1 K0_NOJ1")
    job_compute(56, 52, 60, "K0_J1")
    a.lab("K0_NOJ1")
    a("s_cmp_ge_u32 s60, 800")
    a("s_cbranch_scc1 K0_END2")
    for i in range(4): a(f"v_lshl_or_b32 v{8+i}, v{73+2*i}, 16, v{72+2*i}")
    a("v_lshlrev_b32 v16, 4, v1")
    a("s_lshl_b32 s32, s60, 10")
    a(f"s_add_u32 s32, s32, {WS_WOF}")
    a("buffer_store_dwordx4 v[8:11], v16, s[24:27], s32 offen")
    a.lab("K0_END2")
    st(); st.flush(0, 30)
    a.lab("K0_END")
    a("s_endpgm")
    return a.text()


K1_LDS = 131072
L_PK = 0; L_V = 32768; L_MOE = 65536

def softmax_pk(a, P, E, TMP, OUT):
    mx, mn, s0, s1, t0, t1 = TMP[0], TMP[2], TMP[4], TMP[6], TMP[8], TMP[10]
    assert all(x % 2 == 0 for x in (mx, mn, s0, s1, t0, t1, E[0])) and all(P[2*i] % 2 == 0 and P[2*i+1] == P[2*i]+1 for i in range(10))
    a(f"v_max3_f32 v{mx}, v{P[0]}, v{P[1]}, v{P[2]}")
    a(f"v_min3_f32 v{mn}, v{P[0]}, v{P[1]}, v{P[2]}")
    for i in range(3, 19, 2):
        a(f"v_max3_f32 v{mx}, v{mx}, v{P[i]}, v{P[i+1]}")
        a(f"v_min3_f32 v{mn}, v{mn}, v{P[i]}, v{P[i+1]}")
    a(f"v_max_f32 v{mx}, v{mx}, v{P[19]}")
    a(f"v_min_f32 v{mn}, v{mn}, v{P[19]}")
    a(f"s_mov_b32 s60, 0x{LOG2E:x}")
    a(f"s_mov_b32 s61, 0x{LOG2E:x}")
    a(f"v_mul_f32 v{mx}, s60, v{mx}")
    a(f"v_mul_f32 v{mn}, s60, v{mn}")
    for i in range(10):
        a(f"v_pk_fma_f32 v[{E[2*i]}:{E[2*i]+1}], v[{P[2*i]}:{P[2*i]+1}], s[60:61], v[{mx}:{mx+1}] op_sel_hi:[1,1,0] neg_lo:[0,0,1] neg_hi:[0,0,1]")
        a(f"v_pk_fma_f32 v[{E[20+2*i]}:{E[20+2*i]+1}], v[{P[2*i]}:{P[2*i]+1}], s[60:61], v[{mn}:{mn+1}] op_sel_hi:[1,1,0] neg_lo:[0,1,0] neg_hi:[0,1,0]")
    for i in range(40):
        a(f"v_exp_f32 v{E[i]}, v{E[i]}")
    a("s_nop 0")
    for base, sA, sB in ((0, s0, t0), (20, s1, t1)):
        a(f"v_pk_add_f32 v[{sA}:{sA+1}], v[{E[base]}:{E[base]+1}], v[{E[base+2]}:{E[base+2]+1}]")
        a(f"v_pk_add_f32 v[{sB}:{sB+1}], v[{E[base+4]}:{E[base+4]+1}], v[{E[base+6]}:{E[base+6]+1}]")
        for i in range(8, 20, 4):
            a(f"v_pk_add_f32 v[{sA}:{sA+1}], v[{sA}:{sA+1}], v[{E[base+i]}:{E[base+i]+1}]")
            a(f"v_pk_add_f32 v[{sB}:{sB+1}], v[{sB}:{sB+1}], v[{E[base+i+2]}:{E[base+i+2]+1}]")
        a(f"v_pk_add_f32 v[{sA}:{sA+1}], v[{sA}:{sA+1}], v[{sB}:{sB+1}]")
        a(f"v_add_f32 v{sA}, v{sA}, v{sA+1}")
    a(f"v_rcp_f32 v{s0}, v{s0}")
    a(f"v_rcp_f32 v{s1}, v{s1}")
    a("s_nop 0")
    for i in range(10):
        a(f"v_pk_mul_f32 v[{E[2*i]}:{E[2*i]+1}], v[{E[2*i]}:{E[2*i]+1}], v[{s0}:{s0+1}] op_sel_hi:[1,0]")
        a(f"v_pk_mul_f32 v[{E[20+2*i]}:{E[20+2*i]+1}], v[{E[20+2*i]}:{E[20+2*i]+1}], v[{s1}:{s1+1}] op_sel_hi:[1,0]")
    for i in range(20):
        a(f"v_cvt_pk_bf16_f32 v{OUT[i]}, v{E[2*i]}, v{E[2*i+1]}")

def wave_max_u32(a, v, t1, t2):
    a("s_nop 1")
    a(f"v_max_u32_dpp v{v}, v{v}, v{v} quad_perm:[1,0,3,2] row_mask:0xf bank_mask:0xf")
    a("s_nop 1")
    a(f"v_max_u32_dpp v{v}, v{v}, v{v} quad_perm:[2,3,0,1] row_mask:0xf bank_mask:0xf")
    a("s_nop 1")
    a(f"v_max_u32_dpp v{v}, v{v}, v{v} row_ror:4 row_mask:0xf bank_mask:0xf")
    a("s_nop 1")
    a(f"v_max_u32_dpp v{v}, v{v}, v{v} row_ror:8 row_mask:0xf bank_mask:0xf")
    for sw in ("v_permlane16_swap_b32", "v_permlane32_swap_b32"):
        a(f"v_mov_b32 v{t1}, v{v}")
        a(f"v_mov_b32 v{t2}, v{v}")
        a("s_nop 1")
        a(f"{sw} v{t1}, v{t2}")
        a("s_nop 1")
        a(f"v_max_u32 v{v}, v{t1}, v{t2}")

def gen_k1():
    a = A()
    a.lab("k1_kernel")
    a("s_cmp_ge_u32 s2, 256")
    a("s_cbranch_scc1 K1_END")
    a("s_load_dwordx4 s[8:11], s[0:1], 48")
    a("s_load_dwordx2 s[12:13], s[0:1], 88")
    a("s_and_b32 s14, s2, 7")
    a("s_lshr_b32 s15, s2, 3")
    a("s_and_b32 s28, s14, 1")
    a("s_lshl_b32 s28, s28, 3")
    a("s_and_b32 s29, s15, 7")
    a("s_add_u32 s28, s28, s29")
    a("s_lshr_b32 s29, s14, 1")
    a("s_lshl_b32 s29, s29, 2")
    a("s_lshr_b32 s15, s15, 3")
    a("s_add_u32 s29, s29, s15")
    a("v_lshrrev_b32 v1, 6, v0")
    a("v_and_b32 v2, 63, v0")
    a("v_lshlrev_b32 v8, 4, v2")
    a("v_readfirstlane_b32 s30, v1")
    LANE=2; L31=3; KH=4; R4=5; C4=6; MG=7; L16=8
    a(f"v_and_b32 v{L31}, 31, v{LANE}")
    a(f"v_lshrrev_b32 v{KH}, 5, v{LANE}")
    a(f"v_bfe_u32 v{R4}, v{LANE}, 2, 2")
    a(f"v_and_b32 v{C4}, 3, v{LANE}")
    a(f"v_bfe_u32 v{MG}, v{LANE}, 4, 1")
    a("s_mul_i32 s62, s2, 171")
    a("s_lshr_b32 s62, s62, 12")
    a("s_mul_i32 s63, s62, 24")
    a("s_sub_u32 s63, s2, s63")
    a("v_lshrrev_b32 v9, 3, v0")
    a("v_and_b32 v10, 7, v0")
    a("s_lshl_b32 s34, s62, 6")
    a("v_add_u32 v11, s34, v9")
    a("v_mul_u32_u24 v12, 3072, v11")
    a("v_lshl_add_u32 v12, v10, 4, v12")
    a("s_lshl_b32 s34, s63, 7")
    a("v_add_u32 v12, s34, v12")
    a("s_waitcnt lgkmcnt(0)")
    srd(a, 24, 12, WS_BYTES)
    srd(a, 16, 8, 1966080)
    srd(a, 20, 10, 1966080)
    st = Stamper(a); st()
    GW=100; UW=108; KY=116; XS=120
    a(f"s_mov_b32 s34, {WS_KEYS}")
    a(f"buffer_load_dwordx4 v[{KY}:{KY+3}], v{L16}, s[24:27], s34 offen")
    a("s_mul_i32 s48, s29, 163840")
    a("s_lshl_b32 s34, s30, 12")
    a("s_add_u32 s48, s48, s34")
    a(f"s_add_u32 s48, s48, {WS_WF}")
    a("s_lshl_b32 s49, s28, 2")
    a("s_add_u32 s49, s49, s30")
    a("s_mul_i32 s49, s49, 40960")
    a(f"s_add_u32 s49, s49, {WS_XF}")
    a("s_mov_b32 s50, s34")
    NST = 8; PRE = 3
    def dma1(kt, e):
        stg = kt % NST
        a(f"s_add_u32 s54, s48, {kt*16384 + e*1024}")
        a(f"s_add_u32 m0, s50, {stg*16384 + e*1024}")
        a(f"s_nop 0")
        a(f"buffer_load_dwordx4 v{L16}, s[24:27], s54 offen lds")
    def dma(kt):
        for e in range(4): dma1(kt, e)
    def ldb(t):
        hi, lo = (t*1024) // 4096 * 4096, (t*1024) % 4096
        a(f"s_add_u32 s54, s49, {hi}")
        a(f"buffer_load_dwordx4 a[{4*t}:{4*t+3}], v{L16}, s[24:27], s54 offen offset:{lo}")
    for kt in range(PRE):
        dma(kt)
        for t in range(4): ldb(4*kt + t)
    AR=[13,14]
    a(f"v_mov_b32 v{AR[0]}, v{L16}")
    a(f"v_add_u32 v{AR[1]}, 0x10000, v{L16}")
    ACC=[64,80,132,148]
    for t in range(4):
        for i in range(16): a(f"v_mov_b32 v{ACC[t]+i}, 0")
    a(f"s_waitcnt vmcnt({8*PRE})")
    a(f"v_max_u32 v{KY}, v{KY}, v{KY+1}")
    a(f"v_max_u32 v{KY+2}, v{KY+2}, v{KY+3}")
    a(f"v_max_u32 v{KY}, v{KY}, v{KY+2}")
    wave_max_u32(a, KY, 18, 19)
    a("s_nop 0")
    a(f"v_readfirstlane_b32 s46, v{KY}")
    a("s_nop 3")
    a("s_and_b32 s47, s46, 0xffff")
    a("s_sub_u32 s47, 0xffff, s47")
    a("s_lshr_b32 s34, s47, 5")
    a("s_mul_i32 s34, s34, 40960")
    a("s_and_b32 s35, s47, 31")
    a("s_lshl_b32 s35, s35, 4")
    a("s_add_u32 s34, s34, s35")
    a(f"s_add_u32 s34, s34, {WS_XF}")
    a("v_lshrrev_b32 v18, 3, v11")
    a("v_lshlrev_b32 v18, 9, v18")
    a("v_and_b32 v19, 7, v11")
    a("v_lshl_add_u32 v18, v19, 1, v18")
    a(f"buffer_load_ushort v{XS}, v18, s[24:27], s34 offen")
    a(f"buffer_load_ushort v{XS+1}, v18, s[24:27], s34 offen offset:2048")
    a("s_or_b32 s34, s2, s30")
    a("s_cmp_lg_u32 s34, 0")
    a("s_cbranch_scc1 K1_NOFK")
    a(f"s_mov_b32 s34, {WS_FKEY}")
    a("v_mov_b32 v18, 0")
    a(f"buffer_store_dword v{KY}, v18, s[24:27], s34 offen")
    a.lab("K1_NOFK")
    AF=[[24,28,32,36],[40,44,48,52]]
    def reads(kt, t, buf):
        stg = kt % NST; hi = stg >> 2; off = (stg & 3)*16384
        for ti in range(4):
            a(f"ds_read_b128 v[{AF[buf][ti]}:{AF[buf][ti]+3}], v{AR[hi]} offset:{off + t*4096 + ti*1024}")
    st()
    issued = 1 + 8*PRE + 2
    grp_end = {kt: 1 + 8*(kt+1) for kt in range(PRE)}
    a(f"s_waitcnt vmcnt({issued - grp_end[0]})")
    a("s_barrier")
    st(); st.cyc()
    reads(0, 0, 0)
    step = 0
    for kt in range(10):
        for t in range(4):
            buf = step & 1
            last = (kt == 9 and t == 3)
            if not last:
                nkt, nt = (kt, t + 1) if t < 3 else (kt + 1, 0)
                reads(nkt, nt, buf ^ 1)
                a("s_waitcnt lgkmcnt(4)")
            else:
                a("s_waitcnt lgkmcnt(0)")
            kk = 4*kt + t
            nk = kt + PRE
            for ti in range(4):
                a(f"v_mfma_f32_32x32x16_bf16 v[{ACC[ti]}:{ACC[ti]+15}], v[{AF[buf][ti]}:{AF[buf][ti]+3}], a[{4*kk}:{4*kk+3}], v[{ACC[ti]}:{ACC[ti]+15}]")
                if nk < 10 and ti == 0:
                    dma1(nk, t); issued += 1
                if nk < 10 and ti == 2:
                    ldb(4*nk + t); issued += 1
                    if t == 3: grp_end[nk] = issued
            if t == 2 and kt < 9:
                a(f"s_waitcnt vmcnt({issued - grp_end[kt+1]})")
                a("s_barrier")
            if kt == 7 and t == 0:
                for i in range(2):
                    a(f"s_mov_b32 s34, {i*32*3072}")
                    a(f"buffer_load_dwordx4 v[{GW+4*i}:{GW+4*i+3}], v12, s[16:19], s34 offen")
                    a(f"buffer_load_dwordx4 v[{UW+4*i}:{UW+4*i+3}], v12, s[20:23], s34 offen")
                issued += 4
            step += 1
    st.cyc(); st()
    a("s_barrier")
    T0=9; T1=10; T2=11; T3=12; ROW=17
    a(f"s_lshl_b32 s34, s30, 5")
    a(f"v_add_u32 v{ROW}, s34, v{L31}")
    VV=24
    for i in range(6): a(f"v_cvt_pk_bf16_f32 v{VV+i}, v{ACC[1]+4+2*i}, v{ACC[1]+5+2*i}")
    for i in range(4): a(f"v_cvt_pk_bf16_f32 v{VV+6+i}, v{ACC[3]+4+2*i}, v{ACC[3]+5+2*i}")
    a(f"v_mov_b32 v{VV+10}, 0x3f80"); a(f"v_mov_b32 v{VV+11}, 0")
    a(f"v_mul_u32_u24 v{T0}, 192, v{ROW}")
    a(f"v_lshl_add_u32 v{T1}, v{KH}, 6, v{T0}")
    a(f"v_add_u32 v{T1}, {L_V}, v{T1}")
    a(f"ds_write_b128 v{T1}, v[{VV}:{VV+3}]")
    a(f"ds_write_b128 v{T1}, v[{VV+4}:{VV+7}] offset:16")
    a(f"ds_write_b128 v{T1}, v[{VV+8}:{VV+11}] offset:32")
    E = [164+i for i in range(40)]
    OUT = [36+i for i in range(20)]
    P = [ACC[2]+i for i in range(16)] + [ACC[3]+i for i in range(4)]
    softmax_pk(a, P, E, [204+i for i in range(12)], OUT)
    a(f"v_mul_u32_u24 v{T3}, 80, v{KH}")
    a(f"v_add_u32 v{T3}, v{T3}, v{T0}")
    for j in range(5):
        a(f"ds_write_b128 v{T3}, v[{OUT[4*j]}:{OUT[4*j]+3}] offset:{L_PK + 16*j}")
    P = [ACC[0]+i for i in range(16)] + [ACC[1]+i for i in range(4)]
    OUT2 = [216+i for i in range(20)]
    softmax_pk(a, P, E, [204+i for i in range(12)], OUT2)
    st()
    a(f"s_lshl_b32 s34, s28, 2")
    a(f"s_add_u32 s34, s34, s30")
    a(f"s_lshl_b32 s34, s34, 4")
    a(f"s_add_u32 s34, s34, s29")
    a(f"s_mul_i32 s34, s34, 5120")
    a(f"v_mul_u32_u24 v{T3}, 2560, v{KH}")
    a(f"v_lshl_add_u32 v{T3}, v{L31}, 4, v{T3}")
    a("s_waitcnt vmcnt(0)")
    a(f"v_lshlrev_b32 v{XS}, 16, v{XS}")
    a(f"v_lshlrev_b32 v{XS+1}, 16, v{XS+1}")
    for (W, base) in ((GW, 64), (UW, 72)):
        for d in range(4):
            a(f"v_lshlrev_b32 v80, 16, v{W+d}")
            a(f"v_and_b32 v81, 0xffff0000, v{W+d}")
            a(f"v_lshlrev_b32 v82, 16, v{W+4+d}")
            a(f"v_and_b32 v83, 0xffff0000, v{W+4+d}")
            a(f"v_mul_f32 v{base+2*d}, v80, v{XS}")
            a(f"v_mul_f32 v{base+2*d+1}, v81, v{XS}")
            a(f"v_fmac_f32 v{base+2*d}, v82, v{XS+1}")
            a(f"v_fmac_f32 v{base+2*d+1}, v83, v{XS+1}")
    a("v_lshrrev_b32 v18, 3, v0")
    a("v_lshlrev_b32 v18, 9, v18")
    a("v_and_b32 v19, 7, v0")
    a("v_lshl_add_u32 v18, v19, 5, v18")
    a(f"v_add_u32 v18, {L_MOE}, v18")
    a("ds_write_b128 v18, v[64:67]")
    a("ds_write_b128 v18, v[68:71] offset:16")
    a("ds_write_b128 v18, v[72:75] offset:256")
    a("ds_write_b128 v18, v[76:79] offset:272")
    for j in range(5):
        a(f"buffer_store_dwordx4 v[{OUT2[4*j]}:{OUT2[4*j]+3}], v{T3}, s[24:27], s34 offen offset:{512*j}")
    a("s_waitcnt lgkmcnt(0)")
    a("s_barrier")
    st()
    a(f"s_and_b32 s60, s30, 1")
    a(f"s_lshr_b32 s61, s30, 1")
    a(f"v_lshl_add_u32 v{T0}, v{KH}, 3, v{R4}")
    a(f"v_mul_u32_u24 v{T0}, 192, v{T0}")
    a(f"v_lshl_add_u32 v{T1}, v{MG}, 2, v{C4}")
    a(f"v_lshl_add_u32 v{T0}, v{T1}, 3, v{T0}")
    a(f"s_lshl_b32 s34, s60, 6")
    a(f"s_add_u32 s34, s34, {L_V}")
    a(f"v_add_u32 v{T2}, s34, v{T0}")
    a(f"s_mul_i32 s34, s60, 80")
    a(f"s_lshl_b32 s35, s61, 6")
    a(f"s_add_u32 s34, s34, s35")
    a(f"s_add_u32 s34, s34, {L_PK}")
    a(f"v_add_u32 v{T3}, s34, v{T0}")
    KA=132; KB=164; D0=64
    for ks in range(8):
        for sec in range(2):
            a(f"ds_read_b64_tr_b16 v[{KA+4*ks+2*sec}:{KA+4*ks+2*sec+1}], v{T2} offset:{ks*3072+sec*768}")
            a(f"ds_read_b64_tr_b16 v[{KB+4*ks+2*sec}:{KB+4*ks+2*sec+1}], v{T3} offset:{ks*3072+sec*768}")
    a("v_and_b32 v18, 127, v0")
    a("v_lshlrev_b32 v19, 2, v18")
    a(f"v_add_u32 v19, {L_MOE}, v19")
    for ks in range(8):
        a(f"s_waitcnt lgkmcnt({min(15, 4*(7-ks))})")
        c = "0" if ks == 0 else f"v[{D0}:{D0+15}]"
        a(f"v_mfma_f32_32x32x16_bf16 v[{D0}:{D0+15}], v[{KA+4*ks}:{KA+4*ks+3}], v[{KB+4*ks}:{KB+4*ks+3}], {c}")
    a(f"s_cmp_ge_u32 s30, 2")
    a(f"s_cbranch_scc1 K1_NOMOE")
    a(f"s_cmp_ge_u32 s2, 240")
    a(f"s_cbranch_scc1 K1_NOMOE")
    for r in range(32): a(f"ds_read_b32 v{24+r}, v19 offset:{512*r}")
    a("s_waitcnt lgkmcnt(15)")
    for r in range(1, 16): a(f"v_add_f32 v24, v24, v{24+r}")
    a("s_waitcnt lgkmcnt(0)")
    for r in range(16, 32): a(f"v_add_f32 v24, v24, v{24+r}")
    a("v_lshrrev_b32 v19, 6, v18")
    a("v_mul_u32_u24 v19, 6144, v19")
    a("v_and_b32 v20, 63, v18")
    a("v_lshl_add_u32 v19, v20, 2, v19")
    a("s_mul_i32 s34, s62, 12288")
    a("s_lshl_b32 s35, s63, 8")
    a("s_add_u32 s34, s34, s35")
    a(f"s_add_u32 s34, s34, {WS_GU}")
    a("buffer_store_dword v24, v19, s[24:27], s34 offen")
    a.lab("K1_NOMOE")
    a(f"s_lshl_b32 s34, s28, 5")
    a(f"s_lshl_b32 s35, s29, 1")
    a(f"s_add_u32 s34, s34, s35")
    a(f"s_add_u32 s34, s34, s60")
    a(f"s_lshl_b32 s34, s34, 1")
    a(f"s_add_u32 s34, s34, s61")
    a(f"s_mul_i32 s34, s34, 3072")
    a(f"s_add_u32 s34, s34, {WS_KVP}")
    a(f"v_lshlrev_b32 v{T0}, 2, v{LANE}")
    a("s_nop 15"); a("s_nop 3")
    for r in range(12):
        a(f"buffer_store_dword v{D0+r}, v{T0}, s[24:27], s34 offen offset:{256*r}")
    st(); st.flush(1, 30)
    a.lab("K1_END")
    a("s_endpgm")
    return a.text()

K2_LDS = 16384
def gen_k2():
    a = A()
    a.lab("k2_kernel")
    a("s_cmp_ge_u32 s2, 112")
    a("s_cbranch_scc1 K2_END")
    a("s_load_dwordx2 s[12:13], s[0:1], 64")
    a("s_load_dwordx2 s[14:15], s[0:1], 88")
    a("v_lshrrev_b32 v1, 6, v0")
    a("v_and_b32 v2, 63, v0")
    a("s_nop 0")
    a("v_readfirstlane_b32 s92, v1")
    a("s_waitcnt lgkmcnt(0)")
    srd(a, 24, 14, WS_BYTES)
    st = Stamper(a); st()
    a("s_cmp_ge_u32 s2, 48")
    a("s_cbranch_scc1 K2_MOE")
    a("s_lshl_b32 s31, s2, 2")
    a("s_add_u32 s31, s31, s92")
    a("v_lshlrev_b32 v3, 4, v2")
    a("s_lshl_b32 s32, s31, 10")
    for rb in range(16):
        a(f"s_add_u32 s37, s32, {WS_KVP + rb*196608}")
        a(f"buffer_load_dwordx4 v[{16+4*rb}:{19+4*rb}], v3, s[24:27], s37 offen")
    a("s_mul_i32 s33, s31, 43")
    a("s_lshr_b32 s33, s33, 8")
    a.l.pop(); a.l.pop()
    a("s_mul_i32 s33, s31, 10923")
    a("s_lshr_b32 s33, s33, 16")
    a("s_mul_i32 s34, s33, 6")
    a("s_sub_u32 s34, s31, s34")
    a("s_cmp_ge_u32 s34, 3")
    a("s_cselect_b32 s35, 1, 0")
    a("s_mul_i32 s36, s35, 3")
    a("s_sub_u32 s36, s34, s36")
    a("s_lshr_b32 s38, s33, 1")
    a("s_and_b32 s39, s33, 1")
    a("v_and_b32 v4, 15, v2")
    a("v_lshrrev_b32 v5, 4, v2")
    a("v_lshrrev_b32 v6, 3, v4")
    a("s_lshl_b32 s40, s36, 3")
    a("v_lshl_add_u32 v7, v6, 2, v5")
    a("v_add_u32 v7, s40, v7")
    a("v_and_b32 v8, 7, v4")
    a("v_lshlrev_b32 v8, 2, v8")
    a("s_lshl_b32 s40, s35, 5")
    a("v_add_u32 v8, s40, v8")
    a("v_lshrrev_b32 v9, 3, v8")
    a("s_mul_i32 s40, s39, 5")
    a("v_add_u32 v9, s40, v9")
    a("v_lshrrev_b32 v10, 1, v9")
    a("v_add_u32 v10, s39, v10")
    a("v_and_b32 v9, 1, v9")
    a("s_mul_i32 s40, s38, 6")
    a("v_add_u32 v10, s40, v10")
    a("v_lshlrev_b32 v10, 6, v10")
    a("v_lshl_add_u32 v10, v9, 5, v10")
    a("v_cmp_le_u32 vcc, 10, v7")
    a("v_subrev_u32 v11, 10, v7")
    a("s_nop 0")
    a("v_cndmask_b32 v11, v7, v11, vcc")
    a("v_cndmask_b32 v12, 0, 4, vcc")
    a("v_lshrrev_b32 v13, 2, v11")
    a("v_lshlrev_b32 v13, 3, v13")
    a("v_and_b32 v14, 3, v11")
    a("v_add3_u32 v13, v13, v14, v12")
    a("v_add_u32 v13, v13, v10")
    a("v_lshlrev_b32 v13, 4, v13")
    a("v_and_b32 v14, 4, v8")
    a("v_lshl_add_u32 v13, v14, 1, v13")
    a("v_cmp_ge_u32 vcc, 20, v7")
    a("v_cmp_gt_u32 s[40:41], 40, v8")
    a("s_and_b64 vcc, vcc, s[40:41]")
    a(f"v_mov_b32 v14, {OOB}")
    a("v_cmp_eq_u32 s[42:43], 20, v7")
    a("v_cndmask_b32 v13, v14, v13, vcc")
    a("s_and_b64 s[42:43], s[42:43], vcc")
    a("v_subrev_u32 v15, 64, v13")
    a("s_nop 0")
    a("v_cndmask_b32 v15, v14, v15, s[42:43]")
    for rb in range(1, 16):
        a(f"s_waitcnt vmcnt({15-rb})")
        for i in range(4): a(f"v_add_f32 v{16+i}, v{16+i}, v{16+4*rb+i}")
    a("v_cvt_pk_bf16_f32 v20, v16, v17")
    a("v_cvt_pk_bf16_f32 v21, v18, v19")
    a(f"s_mov_b32 s37, {WS_KVF}")
    a("buffer_store_dwordx2 v[20:21], v13, s[24:27], s37 offen")
    a("buffer_store_dwordx2 v[20:21], v15, s[24:27], s37 offen")
    a("s_cmp_lg_u32 s34, 3")
    a("s_cbranch_scc1 K2_END2")
    a("s_mul_i32 s40, s38, 6")
    a("s_add_u32 s40, s40, 2")
    a("s_add_u32 s40, s40, s39")
    a("s_lshl_b32 s40, s40, 10")
    a("s_xor_b32 s41, s39, 1")
    a("s_lshl_b32 s41, s41, 9")
    a("s_add_u32 s40, s40, s41")
    a(f"s_add_u32 s40, s40, {WS_KVF}")
    for i in range(4): a(f"v_mov_b32 v{24+i}, 0")
    a("v_cmp_gt_u32 vcc, 32, v2")
    a("s_and_saveexec_b64 s[42:43], vcc")
    a("buffer_store_dwordx4 v[24:27], v3, s[24:27], s40 offen")
    a("s_mov_b64 exec, s[42:43]")
    a("s_branch K2_END2")
    a.lab("K2_MOE")
    a("s_sub_u32 s93, s2, 48")
    srd(a, 36, 12, 1966080)
    a("v_mul_u32_u24 v6, 205, v0")
    a("v_lshrrev_b32 v6, 14, v6")
    a("v_mul_u32_u24 v7, 80, v6")
    a("v_sub_u32 v7, v0, v7")
    a("s_mul_i32 s44, s93, 24")
    a("v_add_u32 v8, s44, v6")
    a("v_mul_u32_u24 v8, 1280, v8")
    a("v_lshl_add_u32 v8, v7, 4, v8")
    a("v_cmp_gt_u32 vcc, 3, v6")
    a(f"v_mov_b32 v9, {OOB}")
    a("s_nop 0")
    a("v_cndmask_b32 v8, v9, v8, vcc")
    DW=32
    a("v_mul_u32_u24 v10, 2731, v0")
    a("v_lshrrev_b32 v10, 16, v10")
    a("v_mul_u32_u24 v11, 24, v10")
    a("v_sub_u32 v11, v0, v11")
    a("v_mul_u32_u24 v10, 6144, v10")
    a("v_lshl_add_u32 v10, v11, 2, v10")
    a("s_mul_i32 s44, s93, 96")
    a("v_add_u32 v10, s44, v10")
    a("v_cmp_gt_u32 vcc, 48, v0")
    a("s_nop 1")
    a("v_cndmask_b32 v10, v9, v10, vcc")
    for ks in range(10):
        a(f"s_mov_b32 s45, {WS_GU + ks*12288}")
        a(f"buffer_load_dword v{12+ks}, v10, s[24:27], s45 offen")
    for i in range(8):
        a(f"s_mov_b32 s45, {i*3*1280}")
        a(f"buffer_load_dwordx4 v[{DW+4*i}:{DW+4*i+3}], v8, s[36:39], s45 offen")
    a("s_waitcnt vmcnt(8)")
    for ks in range(1, 10): a(f"v_add_f32 v12, v12, v{12+ks}")
    round_bf16(a, 12)
    a("v_lshlrev_b32 v11, 2, v0")
    a("v_cmp_gt_u32 vcc, 64, v0")
    a("s_and_saveexec_b64 s[56:57], vcc")
    a("ds_write_b32 v11, v12")
    a("s_waitcnt lgkmcnt(0)")
    a("ds_read_b32 v13, v11 offset:96")
    a("s_waitcnt lgkmcnt(0)")
    a(f"s_mov_b32 s60, 0x{LOG2E:x}")
    a("v_mul_f32 v17, s60, v12")
    a("v_exp_f32 v17, -v17")
    a("s_nop 0")
    a("v_add_f32 v17, 1.0, v17")
    a("v_rcp_f32 v17, v17")
    a("s_nop 0")
    a("v_mul_f32 v16, v12, v17")
    round_bf16(a, 16)
    a("v_mul_f32 v16, v16, v13")
    round_bf16(a, 16)
    a("ds_write_b32 v11, v16 offset:512")
    a("s_mov_b64 exec, s[56:57]")
    a("s_waitcnt lgkmcnt(0)")
    a("s_barrier")
    a("v_lshlrev_b32 v11, 2, v6")
    for i in range(8): a(f"ds_read_b32 v{12+i}, v11 offset:{512 + 12*i}")
    AG=72
    a("s_waitcnt vmcnt(0) lgkmcnt(0)")
    a("v_cmp_gt_u32 vcc, 3, v6")
    a("s_nop 1")
    for i in range(8): a(f"v_cndmask_b32 v{12+i}, 0, v{12+i}, vcc")
    for i in range(8):
        for d in range(4):
            a(f"v_lshlrev_b32 v24, 16, v{DW+4*i+d}")
            a(f"v_and_b32 v25, 0xffff0000, v{DW+4*i+d}")
            if i == 0:
                a(f"v_mul_f32 v{AG+2*d}, v24, v{12+i}")
                a(f"v_mul_f32 v{AG+2*d+1}, v25, v{12+i}")
            else:
                a(f"v_fmac_f32 v{AG+2*d}, v24, v{12+i}")
                a(f"v_fmac_f32 v{AG+2*d+1}, v25, v{12+i}")
    RED3=4096
    a("v_lshlrev_b32 v11, 5, v0")
    a(f"ds_write_b128 v11, v[{AG}:{AG+3}] offset:{RED3}")
    a(f"ds_write_b128 v11, v[{AG+4}:{AG+7}] offset:{RED3+16}")
    a("s_waitcnt lgkmcnt(0)")
    a("s_barrier")
    a("v_cmp_gt_u32 vcc, 160, v0")
    a("s_and_saveexec_b64 s[56:57], vcc")
    a("v_lshlrev_b32 v11, 4, v0")
    for q in range(3): a(f"ds_read_b128 v[{16+4*q}:{19+4*q}], v11 offset:{RED3 + 2560*q}")
    a("s_waitcnt lgkmcnt(0)")
    for i in range(4):
        a(f"v_add_f32 v{16+i}, v{16+i}, v{20+i}")
        a(f"v_add_f32 v{16+i}, v{16+i}, v{24+i}")
    a("s_mul_i32 s44, s93, 2560")
    a(f"s_add_u32 s44, s44, {WS_YP}")
    a("buffer_store_dwordx4 v[16:19], v11, s[24:27], s44 offen")
    a("s_mov_b64 exec, -1")
    a.lab("K2_END2")
    if STAMPS: a("s_waitcnt vmcnt(0)")
    st(); st.flush(2, 92)
    a.lab("K2_END")
    a("s_endpgm")
    return a.text()

K3_Y2 = 0
K3_PB = 4608
K3_LDS = 4*32*656 + K3_PB
def gen_k3():
    a = A()
    a.lab("k3_kernel")
    a("s_cmp_ge_u32 s2, 256")
    a("s_cbranch_scc1 K3_END")
    a("s_load_dwordx2 s[4:5], s[0:1], 0")
    a("s_load_dwordx2 s[6:7], s[0:1], 72")
    a("s_load_dwordx2 s[14:15], s[0:1], 88")
    a("v_lshrrev_b32 v1, 6, v0")
    a("v_and_b32 v2, 63, v0")
    a("v_lshlrev_b32 v3, 4, v2")
    a("v_readfirstlane_b32 s30, v1")
    a("s_and_b32 s31, s2, 7")
    a("s_lshr_b32 s32, s2, 3")
    a("s_and_b32 s33, s32, 3")
    a("s_lshr_b32 s32, s32, 2")
    a("s_lshl_b32 s31, s31, 3")
    a("s_add_u32 s34, s31, s32")
    a("s_waitcnt lgkmcnt(0)")
    a(f"s_add_u32 s80, s14, {WS_FKEY}")
    a(f"s_addc_u32 s81, s15, 0")
    a(f"s_load_dword s46, s[80:81], 0")
    srd(a, 24, 14, WS_BYTES)
    srd(a, 16, 4, 2621440)
    srd(a, 20, 6, 2621440)
    st = Stamper(a); st()
    ES=[8,9,10,11,12]; EU=[13,14,15,16,17]; EO=[18,19,20,21,22]
    XV=24; SV=34
    a("s_lshl_b32 s35, s34, 5")
    a("s_mul_i32 s36, s33, 320")
    a("s_lshl_b32 s37, s34, 4")
    a("s_lshl_b32 s38, s30, 2")
    a("s_add_u32 s37, s37, s38")
    a("s_mul_i32 s37, s37, 5120")
    a("s_mul_i32 s38, s30, 24576")
    a(f"s_add_u32 s38, s38, {WS_KVF}")
    a("s_mul_i32 s39, s30, 200")
    a("s_mul_i32 s40, s33, 50")
    a("s_add_u32 s39, s39, s40")
    a("s_lshl_b32 s39, s39, 10")
    a(f"s_add_u32 s39, s39, {WS_WOF}")
    def ld(base, sbase, off):
        hi, lo = off // 4096 * 4096, off % 4096
        a(f"s_add_u32 s41, s{sbase}, {hi}")
        a(f"buffer_load_dwordx4 a[{base}:{base+3}], v3, s[24:27], s41 offen offset:{lo}")
    def ldP(pl):
        for t in range(5): ld(20*pl+4*t, 37, (pl*5+t)*1024)
        for fi in range(6): ld(80+24*pl+4*fi, 38, (pl*6+fi)*1024)
    a("v_and_b32 v4, 31, v2")
    a("v_cmp_gt_u32 vcc, 24, v4")
    a(f"v_mov_b32 v5, {OOB}")
    a("s_nop 0")
    a("v_cndmask_b32 v7, v5, v3, vcc")
    def ldk(base, off):
        hi, lo = off // 4096 * 4096, off % 4096
        a(f"s_add_u32 s41, s38, {hi}")
        a(f"buffer_load_dwordx4 a[{base}:{base+3}], v7, s[24:27], s41 offen offset:{lo}")
    def ldP(pl):
        for t in range(5): ld(20*pl+4*t, 37, (pl*5+t)*1024)
        for fi in range(6): ldk(80+24*pl+4*fi, (pl*6+fi)*1024)
    ldP(0); ldP(1)
    a(f"s_mov_b32 s42, {WS_STATS}")
    for q in range(5):
        a(f"v_add_u32 v4, {256*q}, v0")
        a(f"v_mul_u32_u24 v{ES[q]}, 1639, v4")
        a(f"v_lshrrev_b32 v{ES[q]}, 16, v{ES[q]}")
        a(f"v_mul_u32_u24 v5, 40, v{ES[q]}")
        a(f"v_sub_u32 v{EU[q]}, v4, v5")
        a(f"v_add_u32 v{ES[q]}, s35, v{ES[q]}")
        a(f"v_mul_u32_u24 v6, 1280, v{ES[q]}")
        a(f"v_lshl_add_u32 v6, v{EU[q]}, 3, v6")
        a(f"v_add_u32 v{EO[q]}, s36, v6")
        a(f"buffer_load_dwordx2 v[{XV+2*q}:{XV+2*q+1}], v{EO[q]}, s[16:19], 0 offen")
        a(f"v_lshlrev_b32 v5, 3, v{ES[q]}")
        a(f"buffer_load_dwordx2 v[{SV+2*q}:{SV+2*q+1}], v5, s[24:27], s42 offen")
    a("s_waitcnt lgkmcnt(0)")
    unsort_key(a, 46, 47, 48)
    a("s_lshr_b32 s49, s47, 5")
    a("v_mul_u32_u24 v4, 1639, v0")
    a("v_lshrrev_b32 v4, 16, v4")
    a("v_mul_u32_u24 v5, 40, v4")
    a("v_sub_u32 v5, v0, v5")
    a("v_mul_u32_u24 v6, 2560, v4")
    a("v_lshl_add_u32 v6, v5, 4, v6")
    a("s_mul_i32 s50, s33, 640")
    a("v_add_u32 v6, s50, v6")
    a(f"v_mov_b32 v23, {OOB}")
    a("s_cmp_eq_u32 s49, s34")
    a("s_cselect_b32 s50, 6, 0")
    a("s_cselect_b32 s51, 4, 0")
    a("v_cmp_gt_u32 vcc, s50, v4")
    a("s_nop 1")
    a("v_cndmask_b32 v6, v23, v6, vcc")
    a("v_cmp_gt_u32 vcc, s51, v4")
    a("s_nop 1")
    a("v_cndmask_b32 v23, v23, v6, vcc")
    YV=192
    for i in range(11):
        a(f"s_mov_b32 s50, {WS_YP + i*6*2560}")
        a(f"buffer_load_dwordx4 v[{YV+4*i}:{YV+4*i+3}], v{6 if i < 10 else 23}, s[24:27], s50 offen")
    def woreg(wi):
        if wi < 20: return 176+4*wi
        j = wi - 20; pl, r = j // 11, j % 11
        return 20*pl + 4*r if r < 5 else 80 + 24*pl + 4*(r-5)
    def ldw(wi):
        t2, k = wi // 5, wi % 5
        ld(woreg(wi), 39, (k*10+t2)*1024)
    D=[[44, 60], [76, 92]]
    OF=108; ACC=148; TT=240
    def p1_mfma(pl):
        Da, Db = D[pl & 1]
        for (Dx, f0, t0) in ((Da, 0, 0), (Db, 3, 2)):
            for i in range(3):
                A_ = 80+24*pl+4*(f0+i); B_ = 20*pl+4*(t0+i)
                c = "0" if i == 0 else f"v[{Dx}:{Dx+15}]"
                a(f"v_mfma_f32_32x32x16_bf16 v[{Dx}:{Dx+15}], a[{A_}:{A_+3}], a[{B_}:{B_+3}], {c}")
    def p1_valu(pl):
        for hh, Dx in enumerate(D[pl & 1]):
            hl = 2*pl + hh
            a(f"v_add_f32 v{TT}, 0x358637bd, v{Dx+10}")
            a(f"v_rcp_f32 v{TT}, v{TT}")
            a("s_nop 0")
            for i in range(10): a(f"v_mul_f32 v{Dx+i}, v{Dx+i}, v{TT}")
            for i in range(5): a(f"v_cvt_pk_bf16_f32 v{OF+5*hl+i}, v{Dx+2*i}, v{Dx+2*i+1}")
    st()
    ldP(2)
    a("s_waitcnt vmcnt(43)")
    p1_mfma(0)
    ldP(3)
    a("s_waitcnt vmcnt(43)")
    p1_mfma(1)
    p1_valu(0)
    for wi in range(0, 10): ldw(wi)
    a("s_waitcnt vmcnt(21)")
    p1_mfma(2)
    p1_valu(1)
    for i in range(1, 11):
        for e in range(4): a(f"v_add_f32 v{YV+e}, v{YV+e}, v{YV+4*i+e}")
    a("v_lshlrev_b32 v4, 4, v0")
    a("v_cmp_gt_u32 vcc, 240, v0")
    a("s_and_saveexec_b64 s[56:57], vcc")
    a(f"ds_write_b128 v4, v[{YV}:{YV+3}] offset:{K3_Y2}")
    a("s_mov_b64 exec, s[56:57]")
    for q in range(5):
        a(f"v_lshlrev_b32 v228, 16, v{XV+2*q}")
        a(f"v_and_b32 v229, 0xffff0000, v{XV+2*q}")
        a(f"v_lshlrev_b32 v230, 16, v{XV+2*q+1}")
        a(f"v_and_b32 v231, 0xffff0000, v{XV+2*q+1}")
        for i in range(4): a(f"v_sub_f32 v{228+i}, v{228+i}, v{SV+2*q}")
        a(f"v_cvt_pk_bf16_f32 v232, v228, v229")
        a(f"v_cvt_pk_bf16_f32 v233, v230, v231")
        a(f"v_lshlrev_b32 v228, 16, v232")
        a(f"v_and_b32 v229, 0xffff0000, v232")
        a(f"v_lshlrev_b32 v230, 16, v233")
        a(f"v_and_b32 v231, 0xffff0000, v233")
        for i in range(4): a(f"v_mul_f32 v{228+i}, v{228+i}, v{SV+2*q+1}")
        a(f"v_cvt_pk_bf16_f32 v{SV+2*q}, v228, v229")
        a(f"v_cvt_pk_bf16_f32 v{SV+2*q+1}, v230, v231")
    for wi in range(10, 20): ldw(wi)
    a("s_waitcnt vmcnt(20)")
    p1_mfma(3)
    p1_valu(2)
    for wi in range(20, 30): ldw(wi)
    p1_valu(3)
    a("s_nop 1")
    st()
    issued = 95; nxt = 30
    for t2 in range(10):
        a(f"s_waitcnt vmcnt({issued - (70 + 5*t2)})")
        for k in range(5):
            A_ = woreg(5*t2+k)
            c = "0" if t2 == 0 else f"v[{ACC+16*k}:{ACC+16*k+15}]"
            a(f"v_mfma_f32_32x32x16_bf16 v[{ACC+16*k}:{ACC+16*k+15}], a[{A_}:{A_+3}], v[{OF+4*t2}:{OF+4*t2+3}], {c}")
        for _ in range(5):
            if nxt < 50:
                ldw(nxt); nxt += 1; issued += 1
    a.lab("K3_P2E")
    st()
    a("v_and_b32 v4, 31, v2")
    a("v_mul_u32_u24 v4, 656, v4")
    a("v_lshrrev_b32 v5, 5, v2")
    a("v_lshl_add_u32 v4, v5, 4, v4")
    a("s_mul_i32 s50, s30, 20992")
    a(f"s_add_u32 s50, s50, {K3_PB}")
    a("v_add_u32 v4, s50, v4")
    a("s_nop 7")
    for k in range(5):
        for g in range(4):
            a(f"ds_write_b128 v4, v[{ACC+16*k+4*g}:{ACC+16*k+4*g+3}] offset:{(8*k+2*g)*16}")
    a("s_waitcnt lgkmcnt(0)")
    a("s_barrier")
    st()
    for q in range(5):
        a(f"v_subrev_u32 v4, s35, v{ES[q]}")
        a(f"v_mul_u32_u24 v4, 656, v4")
        a(f"v_lshl_add_u32 v4, v{EU[q]}, 4, v4")
        a(f"v_add_u32 v4, {K3_PB}, v4")
        for w in range(4):
            a(f"ds_read_b128 v[{44+16*q+4*w}:{47+16*q+4*w}], v4 offset:{w*20992}")
    a("s_cmp_lg_u32 s49, s34")
    a("s_cbranch_scc1 K3_NOY")
    a(f"s_mov_b32 s60, 0x{LOG2E:x}")
    a("v_mov_b32 v232, s48")
    a("v_mul_f32 v232, s60, v232")
    a("v_exp_f32 v232, -v232")
    a("s_nop 0")
    a("v_add_f32 v232, 1.0, v232")
    a("v_rcp_f32 v232, v232")
    a("s_nop 0")
    round_bf16(a, 232)
    for q in range(5):
        a(f"v_cmp_eq_u32 vcc, s47, v{ES[q]}")
        a("s_and_saveexec_b64 s[56:57], vcc")
        a(f"s_cbranch_execz K3_YS{q}")
        a(f"v_lshlrev_b32 v5, 4, v{EU[q]}")
        for jg in range(6): a(f"ds_read_b128 v[{128+4*jg}:{131+4*jg}], v5 offset:{K3_Y2 + 640*jg}")
        a("s_waitcnt lgkmcnt(0)")
        for jg in range(1, 6):
            for e in range(4): a(f"v_add_f32 v{128+e}, v{128+e}, v{128+4*jg+e}")
        a(f"v_lshlrev_b32 v228, 16, v{SV+2*q}")
        a(f"v_and_b32 v229, 0xffff0000, v{SV+2*q}")
        a(f"v_lshlrev_b32 v230, 16, v{SV+2*q+1}")
        a(f"v_and_b32 v231, 0xffff0000, v{SV+2*q+1}")
        for e in range(4):
            round_bf16(a, 128+e)
            a(f"v_mul_f32 v{128+e}, v{128+e}, v232")
            round_bf16(a, 128+e)
            a(f"v_add_f32 v{228+e}, v{228+e}, v{128+e}")
        a(f"v_cvt_pk_bf16_f32 v{SV+2*q}, v228, v229")
        a(f"v_cvt_pk_bf16_f32 v{SV+2*q+1}, v230, v231")
        a.lab(f"K3_YS{q}")
        a("s_mov_b64 exec, s[56:57]")
    a.lab("K3_NOY")
    a("s_waitcnt lgkmcnt(0)")
    for q in range(5):
        b = 44+16*q
        for i in range(4):
            a(f"v_add_f32 v{b+i}, v{b+i}, v{b+4+i}")
            a(f"v_add_f32 v{b+8+i}, v{b+8+i}, v{b+12+i}")
            a(f"v_add_f32 v{b+i}, v{b+i}, v{b+8+i}")
        a(f"v_cvt_pk_bf16_f32 v232, v{b}, v{b+1}")
        a(f"v_cvt_pk_bf16_f32 v233, v{b+2}, v{b+3}")
        a(f"v_lshlrev_b32 v{b}, 16, v232")
        a(f"v_and_b32 v{b+1}, 0xffff0000, v232")
        a(f"v_lshlrev_b32 v{b+2}, 16, v233")
        a(f"v_and_b32 v{b+3}, 0xffff0000, v233")
        a(f"v_lshlrev_b32 v228, 16, v{XV+2*q}")
        a(f"v_and_b32 v229, 0xffff0000, v{XV+2*q}")
        a(f"v_lshlrev_b32 v230, 16, v{XV+2*q+1}")
        a(f"v_and_b32 v231, 0xffff0000, v{XV+2*q+1}")
        for i in range(4): a(f"v_add_f32 v{b+i}, v{b+i}, v{228+i}")
        a(f"v_cvt_pk_bf16_f32 v232, v{b}, v{b+1}")
        a(f"v_cvt_pk_bf16_f32 v233, v{b+2}, v{b+3}")
        a(f"v_lshlrev_b32 v{b}, 16, v232")
        a(f"v_and_b32 v{b+1}, 0xffff0000, v232")
        a(f"v_lshlrev_b32 v{b+2}, 16, v233")
        a(f"v_and_b32 v{b+3}, 0xffff0000, v233")
        a(f"v_lshlrev_b32 v228, 16, v{SV+2*q}")
        a(f"v_and_b32 v229, 0xffff0000, v{SV+2*q}")
        a(f"v_lshlrev_b32 v230, 16, v{SV+2*q+1}")
        a(f"v_and_b32 v231, 0xffff0000, v{SV+2*q+1}")
        for i in range(4): a(f"v_add_f32 v{b+i}, v{b+i}, v{228+i}")
        a(f"v_cvt_pk_bf16_f32 v{b+4}, v{b}, v{b+1}")
        a(f"v_cvt_pk_bf16_f32 v{b+5}, v{b+2}, v{b+3}")
        a(f"buffer_store_dwordx2 v[{b+4}:{b+5}], v{EO[q]}, s[20:23], 0 offen")
    if STAMPS: a("s_waitcnt vmcnt(0)")
    st(); st.flush(3, 30)
    a.lab("K3_END")
    a("s_endpgm")
    return a.text()

def build(kernels):
    s = "; generated by work/gen2.py\n"
    s += header([(k[0], k[3], k[4], k[5]) for k in kernels])
    s += '.amdgcn_target "amdgcn-amd-amdhsa--gfx950"\n.text\n'
    for k in kernels:
        s += f".globl {k[0]}\n.p2align 8\n.type {k[0]},@function\n" + k[1]
    s += '.section .rodata,"a"\n'
    for k in kernels:
        s += ".p2align 6\n" + kdesc(k[0], k[2], accum=k[6])
    return s

if __name__ == "__main__":
    if "--stamps" in sys.argv:
        STAMPS = True; sys.argv.remove("--stamps")
    ks = [("k0_kernel", gen_k0(), 256, 256, 256, K0_LDS, None),
          ("k1_kernel", gen_k1(), 416, 256, 256, K1_LDS, 256),
          ("k2_kernel", gen_k2(), 256 if STAMPS else 96, 112, 256, K2_LDS, None),
          ("k3_kernel", gen_k3(), 512, 256, 256, K3_LDS, 256)]
    out = sys.argv[1] if len(sys.argv) > 1 else "b.s"
    open(out, "w").write(build(ks))
```
